```python
import torch

def _softmax(x, axis=-1):
    return torch.softmax(x, dim=axis)
def _gelu(x):
    return torch.nn.functional.gelu(x, approximate="tanh")
def _silu(x):
    return torch.nn.functional.silu(x)
def _sigmoid(x):
    return torch.sigmoid(x)
def _layernorm(x, axis=-1, eps=1e-5):
    m = x.mean(dim=axis, keepdim=True)
    v = x.var(dim=axis, keepdim=True, unbiased=False)
    return (x - m) / torch.sqrt(v + eps)
def _scatter_add(tgt, idx, src, axis=0):
    return tgt.clone().index_add_(axis, idx, src)
def _segment_sum(src, seg, n):
    out = torch.zeros((n,) + src.shape[1:], dtype=src.dtype)
    return out.index_add_(0, seg, src)
def _pad(x, pw):
    flat = tuple(v for pair in reversed(pw) for v in pair)
    return torch.nn.functional.pad(x, flat)

kernel_name = 'recurrent_scan__spectral_gfnet__swiglu_ffn__prompt'

def setup_inputs():

    _w = (lambda a: (lambda t: t.to(torch.bfloat16) if t.is_floating_point() else t)(torch.as_tensor(a)))
    def _A_setup():
        B, S, D = 1, 2048, 640
        Df = D // 2 + 1
        return {
            "x": _w((lambda *s: torch.randn(*s, dtype=torch.bfloat16) * 0.05)(B, S, D)),
            "w_r": _w((lambda *s: torch.randn(*s, dtype=torch.bfloat16) * 0.1)(S, Df) * 0.02),
            "w_i": _w((lambda *s: torch.randn(*s, dtype=torch.bfloat16) * 0.1)(S, Df) * 0.02),
        }
    _A_in = _A_setup()

    def _B_setup():
        B, S, D, F = 1, 2048, 640, 1536
        return {
            "x": _w((lambda *s: torch.randn(*s, dtype=torch.bfloat16) * 0.05)(B, S, D)),
            "w_gate": _w((lambda *s: torch.randn(*s, dtype=torch.bfloat16) * 0.05)(D, F)),
            "w_up": _w((lambda *s: torch.randn(*s, dtype=torch.bfloat16) * 0.05)(D, F)),
            "w_down": _w((lambda *s: torch.randn(*s, dtype=torch.bfloat16) * 0.05)(F, D)),
        }
    _B_in = _B_setup()

    return {
        "A_x": _A_in["x"],
        "A_w_r": _A_in["w_r"],
        "A_w_i": _A_in["w_i"],
        "B_x": _B_in["x"],
        "B_w_gate": _B_in["w_gate"],
        "B_w_up": _B_in["w_up"],
        "B_w_down": _B_in["w_down"],
    }

def reference(A_x, A_w_r, A_w_i, B_x, B_w_gate, B_w_up, B_w_down):
    def _A_ref(x, w_r, w_i):
        B, S, D = x.shape
        X = (lambda x, axes=(-2,-1): torch.fft.rfft2(x.float(), dim=axes))(x, axes=(-2, -1))
        W = w_r + 1j * w_i
        X = X * W
        y = (lambda x, s, axes=(-2,-1): torch.fft.irfft2(x, s=s, dim=axes).to(torch.bfloat16))(X, (S, D), axes=(-2, -1))
        return y

    def _B_ref(x, w_gate, w_up, w_down):
        g = _silu(x @ w_gate)
        u = x @ w_up
        return (g * u) @ w_down

    x = A_x
    xn = _layernorm(x, axis=-1)
    s = _A_ref(xn, A_w_r, A_w_i)
    g = _silu(_B_ref(xn, B_w_gate, B_w_up, B_w_down))
    return x + s * g
```

```python
import re

TRANS = ('v_exp_f32', 'v_log_f32', 'v_rcp_f32', 'v_rsq_f32', 'v_sqrt_f32', 'v_sin_f32', 'v_cos_f32', 'v_rcp_iflag_f32')
REG = re.compile(r'(?<![\w.])([vas])\[(\d+):(\d+)\]|(?<![\w.\[])([vas])(\d+)\b|\b(vcc|exec|m0|scc)\b')

def regs_of(op):
    out = set()
    for m in REG.finditer(op):
        if m.group(1):
            out |= {(m.group(1), i) for i in range(int(m.group(2)), int(m.group(3)) + 1)}
        elif m.group(4):
            out.add((m.group(4), int(m.group(5))))
        else:
            out.add((m.group(6), 0))
    return out

def split_ops(s):
    ops, depth, cur = [], 0, ''
    for ch in s:
        if ch in '[(': depth += 1
        if ch in '])': depth -= 1
        if ch == ',' and depth == 0:
            ops.append(cur.strip()); cur = ''
        else: cur += ch
    if cur.strip(): ops.append(cur.strip())
    return ops

class Ins:
    def __init__(self, text):
        self.text = text
        t = text.split(';')[0].strip()
        self.label = t[:-1] if t.endswith(':') else None
        self.directive = t.startswith('.') and not self.label
        self.mn = ''; self.w = set(); self.r = set(); self.kind = 'none'; self.target = None
        self.srcC = set(); self.srcAB = set(); self.passes = 0; self.stdata = set(); self.states = 0
        if self.label or self.directive or not t: return
        parts = t.split(None, 1)
        mn = self.mn = parts[0]
        rest = parts[1] if len(parts) > 1 else ''
        ops = split_ops(rest)
        self.states = 1
        R = [regs_of(o) for o in ops]
        allr = set().union(*R) if R else set()
        self.dpp = bool(re.search(r'\b(row_|quad_perm|wave_|row_bcast)', rest))
        self.sdwa = 'sdwa' in mn or 'dst_sel' in rest
        if mn == 's_nop':
            self.kind = 'nop'; self.states = int(ops[0], 0) + 1
        elif mn.startswith('v_mfma'):
            self.kind = 'mfma'; self.w = R[0]; self.srcAB = R[1] | R[2]; self.srcC = R[3]; self.r = self.srcAB | self.srcC
            self.passes = 8 if '32x32' in mn else 4
        elif mn.startswith('v_'):
            self.kind = 'valu'
            if mn.startswith('v_cmpx'):
                self.w = R[0] | {('exec', 0)}; self.r = set().union(*R[1:])
            elif mn.startswith(('v_add_co', 'v_sub_co', 'v_addc_co', 'v_subb_co', 'v_subrev_co', 'v_div_scale', 'v_mad_u64')):
                self.w = R[0] | R[1]; self.r = set().union(*R[2:])
            elif 'swap' in mn:
                self.w = R[0] | R[1]; self.r = R[0] | R[1]
            else:
                self.w = R[0]; self.r = set().union(*R[1:]) if len(R) > 1 else set()
                if mn.startswith(('v_fmac', 'v_dot2c', 'v_pk_fmac', 'v_writelane')) or self.dpp or self.sdwa: self.r = self.r | R[0]
        elif mn.startswith(('buffer_', 'global_')):
            self.kind = 'vmem'
            lds = bool(re.search(r'\blds\b', rest)) or '_lds_' in mn
            if mn in ('buffer_wbl2', 'buffer_inv'):
                pass
            elif 'load' in mn and not lds:
                self.w = R[0]; self.r = set().union(*R[1:])
            elif lds:
                self.r = allr | {('m0', 0)}; self.ldsdma = True
            else:
                self.r = allr
                if 'atomic' in mn and re.search(r'\bsc0\b', rest): self.w = R[0]
                if 'x3' in mn or 'x4' in mn:
                    self.stdata = R[0] if mn.startswith('buffer_') else R[1]
        elif mn.startswith('ds_'):
            self.kind = 'ds'
            if 'read' in mn or 'bpermute' in mn or 'permute' in mn or 'swizzle' in mn or '_rtn' in mn:
                self.w = R[0]; self.r = set().union(*R[1:])
            else:
                self.r = allr
            if 'addtid' in mn: self.r = self.r | {('m0', 0)}; self.ldsdma = True
        elif mn.startswith(('s_load', 's_memtime', 's_memrealtime', 's_buffer_load')):
            self.kind = 'smem'; self.w = R[0]; self.r = set().union(*R[1:]) if len(R) > 1 else set()
        elif mn.startswith(('s_branch', 's_cbranch')):
            self.kind = 'branch'; self.target = ops[0]
            if 'vcc' in mn: self.r = {('vcc', 0)}
            if 'exec' in mn: self.r = {('exec', 0)}
        elif mn in ('s_waitcnt', 's_barrier', 's_endpgm', 's_sleep', 's_setprio'):
            self.kind = mn
        elif mn.startswith('s_'):
            self.kind = 'salu'
            if mn.startswith(('s_cmp', 's_bitcmp')): self.r = allr
            elif 'saveexec' in mn: self.w = R[0] | {('exec', 0)}; self.r = set().union(*R[1:]) | {('exec', 0)}
            else:
                self.w = R[0]; self.r = set().union(*R[1:]) if len(R) > 1 else set()
        else:
            raise ValueError("unknown instruction: " + text)

def isv(s): return {x for x in s if x[0] in 'va' and len(x[0]) == 1}
def iss(s): return {x for x in s if x[0] in ('s', 'vcc')}

def need(p, c):
    n = 0
    if p.kind == 'valu':
        pv = isv(p.w); ps = iss(p.w)
        if c.kind == 'mfma' and pv & c.r: n = max(n, 3 if p.mn.startswith('v_dot') else 2)
        if c.kind == 'valu':
            if pv & c.r:
                if c.dpp or 'permlane' in c.mn: n = max(n, 2)
                if c.mn.startswith(('v_readlane', 'v_readfirstlane')): n = max(n, 1)
                if p.mn.startswith(TRANS): n = max(n, 1)
                if p.sdwa or 'op_sel' in p.text and not p.mn.startswith('v_pk'): n = max(n, 1)
            if p.mn.startswith('v_dot') and (pv & (c.r | c.w)) and c.mn != p.mn: n = max(n, 3)
            if ps & c.r:
                n = max(n, 4 if c.mn.startswith(('v_readlane', 'v_writelane', 'v_div_fmas')) else 2)
            if ('exec', 0) in p.w:
                if c.dpp: n = max(n, 5)
                if c.mn.startswith(('v_readlane', 'v_readfirstlane', 'v_writelane', 'v_permlane')): n = max(n, 4)
        if c.kind in ('vmem', 'ds') and p.mn.startswith('v_dot') and pv & c.r: n = max(n, 3)
        if c.kind in ('vmem', 'ds') and p.mn.startswith(TRANS) and pv & c.r: n = max(n, 1)
        if c.kind == 'vmem' and ps & c.r: n = max(n, 5)
        if c.kind == 'mfma' and ('exec', 0) in p.w: n = max(n, 4)
        if c.kind == 'branch' and (p.w & c.r): n = max(n, 5)
        if c.kind in ('salu', 'smem') and ps & c.r: n = max(n, 1)
    if p.kind == 'mfma':
        big = {4: 8, 8: 12}[p.passes]
        if c.kind == 'mfma':
            if p.w & c.srcAB: n = max(n, big)
            if p.w & c.srcC and not (p.w == c.srcC and p.passes == c.passes): n = max(n, big - 2)
            if p.w & c.w and not (p.w & c.srcC): n = max(n, big)
        elif c.kind in ('valu', 'vmem', 'ds'):
            if p.w & (c.r | c.w): n = max(n, big)
            if c.kind == 'valu' and p.srcC & c.w: n = max(n, p.passes - 1)
    if p.kind == 'salu' and ('m0', 0) in p.w and getattr(c, 'ldsdma', False): n = max(n, 1)
    if p.stdata and p.stdata & c.w: n = max(n, 2 if c.kind in ('valu', 'mfma') else 1)
    return n

class Asm:
    def __init__(self): self.L = []
    def __call__(self, *lines):
        for s in lines:
            for t in s.split('\n'):
                t = t.strip()
                if t: self.L.append(t)
    def text(self, pad=True, verbose=False):
        ins = [Ins(t) for t in self.L]
        if pad: ins = pad_hazards(ins, verbose)
        check_waits(ins)
        return '\n'.join((i.text if i.label else '    ' + i.text) for i in ins)

def preds(ins):
    lab = {i.label: k for k, i in enumerate(ins) if i.label}
    P = [[] for _ in ins]
    for k, i in enumerate(ins):
        if k + 1 < len(ins) and i.mn not in ('s_branch', 's_endpgm'): P[k + 1].append(k)
        if i.kind == 'branch' and i.target in lab: P[lab[i.target]].append(k)
    return P

def pad_hazards(ins, verbose=False):
    total = 0
    k = 0
    P = preds(ins)
    while k < len(ins):
        c = ins[k]
        if c.states and c.kind != 'nop':
            worst = 0; why = None
            stack = [(p, 0) for p in P[k]]
            seen = {}
            while stack:
                j, d = stack.pop()
                if d >= 20 or seen.get(j, 99) <= d: continue
                seen[j] = d
                p = ins[j]
                if p.states:
                    n = need(p, c) - d
                    if n > worst: worst = n; why = p
                for q in P[j]: stack.append((q, d + p.states))
            if worst > 0:
                if verbose: print(f"pad {worst}: [{why.text}] -> [{c.text}]")
                ins.insert(k, Ins(f"s_nop {worst-1}"))
                total += worst
                P = preds(ins)
                k += 1
        k += 1
    return ins

def check_waits(ins):
    lab = {i.label: k for k, i in enumerate(ins) if i.label}
    vm, lg = [], []
    taken = set(); k = 0; bad = set()
    while k < len(ins):
        i = ins[k]
        if i.kind == 's_waitcnt':
            m = re.search(r'vmcnt\((\d+)\)', i.text)
            if m:
                n = int(m.group(1)); vm = vm[len(vm) - n:] if n < len(vm) else vm
                if n == 0: vm = []
            m = re.search(r'lgkmcnt\((\d+)\)', i.text)
            if m:
                n = int(m.group(1))
                if n == 0: lg = []
                else:
                    ds = [x for x in lg if not x[1]]
                    lg = [x for x in lg if x[1]] + (ds[len(ds) - n:] if n < len(ds) else ds)
        elif i.states:
            use = i.r | i.w
            for q in vm:
                if q & use and not (i.kind == 'vmem' and not (q & i.r)) and k not in bad:
                    bad.add(k); print("WAIT? vm in flight:", i.text)
            for q, _ in lg:
                if q & use and not (i.kind == 'ds' and not (q & i.r)) and k not in bad:
                    bad.add(k); print("WAIT? lgkm in flight:", i.text)
            if i.kind == 'vmem': vm.append(i.w)
            if i.kind == 'ds': lg.append((i.w, False))
            if i.kind == 'smem': lg.append((i.w, True))
            if len(vm) > 63 and k not in bad: bad.add(k); print("vmcnt overflow at", i.text)
        if i.kind == 'branch' and i.target in lab:
            t = lab[i.target]
            if t < k and k not in taken:
                taken.add(k); k = t; continue
            if i.mn == 's_branch' and t > k:
                k = t; continue
        k += 1

TARGET = '.amdgcn_target "amdgcn-amd-amdhsa--gfx950"\n'
def kernel(label, body, vgpr=256, sgpr=102, accum=None):
    if accum is None: accum = min(256, (vgpr + 3)//4*4)
    return f"""
.text
.globl {label}
.p2align 8
.type {label},@function
{label}:
{body}
.section .rodata,"a"
.p2align 6
.amdhsa_kernel {label}
  .amdhsa_next_free_vgpr {vgpr}
  .amdhsa_next_free_sgpr {sgpr}
  .amdhsa_accum_offset {accum}
  .amdhsa_group_segment_fixed_size 0
  .amdhsa_kernarg_size 80
  .amdhsa_user_sgpr_count 2
  .amdhsa_user_sgpr_kernarg_segment_ptr 1
  .amdhsa_system_sgpr_workgroup_id_x 1
.end_amdhsa_kernel
"""
import struct
def fbits(x): return '0x%08x' % struct.unpack('<I', struct.pack('<f', x))[0]
def v(a, n=1): return f"v{a}" if n == 1 else f"v[{a}:{a+n-1}]"
def a_(a, n=1): return f"a{a}" if n == 1 else f"a[{a}:{a+n-1}]"
def s(a, n=1): return f"s{a}" if n == 1 else f"s[{a}:{a+n-1}]"
```

```python
from asmkit import *
import math
XW_BLK = 21504
XW, ST, WD, H, Y, FLG = 0, 0x540000, 0x600000, 0x800000, 0xE00000, 0x1100000
WS_SIZE = 0x1200000
SRD_X, SRD_WS, SRD_F, SRD_W, SRD_WD, SRD_O = 4, 8, 12, 16, 20, 24
S_W = 3

def srd(k, d, lo, nbytes):
    k(f"s_mov_b32 s{d}, s{lo}", f"s_mov_b32 s{d+1}, s{lo+1}", f"s_mov_b32 s{d+2}, {nbytes}", f"s_mov_b32 s{d+3}, 0x20000")

def prologue(k, nwg, end):
    k(f"s_cmp_ge_u32 s2, {nwg}", f"s_cbranch_scc1 {end}")
    stamp_begin(k)
    k("s_load_dwordx16 s[36:51], s[0:1], 0", "s_load_dwordx4 s[52:55], s[0:1], 64")
    k("v_lshrrev_b32 v2, 6, v0", "v_and_b32 v1, 63, v0", f"v_readfirstlane_b32 s{S_W}, v2")

def build_srds(k):
    k("s_waitcnt lgkmcnt(0)")
    srd(k, SRD_X, 36, 2048*640*2)
    srd(k, SRD_WS, 54, WS_SIZE)
    k(f"s_bitcmp1_b32 s{S_W}, 0")
    k(f"s_cselect_b32 s{SRD_F}, s40, s38", f"s_cselect_b32 s{SRD_F+1}, s41, s39", f"s_mov_b32 s{SRD_F+2}, {2048*321*2}", f"s_mov_b32 s{SRD_F+3}, 0x20000")
    k(f"s_bitcmp1_b32 s{S_W}, 1")
    k(f"s_cselect_b32 s{SRD_W}, s46, s44", f"s_cselect_b32 s{SRD_W+1}, s47, s45", f"s_mov_b32 s{SRD_W+2}, {640*1536*2}", f"s_mov_b32 s{SRD_W+3}, 0x20000")
    srd(k, SRD_WD, 48, 640*1536*2)
    srd(k, SRD_O, 50, 2048*640*2)

STAMPS = False
STAMP_OFF = 0x1180000
def stamp(k, i):
    if STAMPS: k(f"{'s_memrealtime' if STAMPS == 'rt' else 's_memtime'} s[{36+2*i}:{37+2*i}]")
def stamp_begin(k):
    if STAMPS: k("s_memtime s[96:97]", "s_memrealtime s[98:99]")
def stamp_end(k, kid, n):
    if not STAMPS: return
    k("s_waitcnt vmcnt(0)", "s_memtime s[94:95]", "s_memrealtime s[100:101]", "s_waitcnt lgkmcnt(0)")
    k(f"s_lshl_b32 s33, s2, 2", f"s_add_u32 s33, s33, s{S_W}", "s_lshl_b32 s33, s33, 6", f"s_add_u32 s33, s33, {STAMP_OFF + kid*65536}")
    k("s_mov_b64 exec, 1", "v_mov_b32 v2, 0")
    vals = ["s98", "s100"] + [("s94", "s96")] + [(f"s{36+2*i}", "s98" if STAMPS == 'rt' else "s96") for i in range(n)]
    for j, x in enumerate(vals):
        if isinstance(x, tuple): k(f"s_sub_u32 s34, {x[0]}, {x[1]}", f"v_mov_b32 v{4+j}, s34")
        else: k(f"v_mov_b32 v{4+j}, {x}")
        k(f"buffer_store_dword v{4+j}, v2, s[{SRD_WS}:{SRD_WS+3}], s33 offen offset:{4*j}")
```

```python
from common import *

def wave_sum(k, regs):
    for ctl in ("row_ror:8 row_mask:0xf", "row_ror:4 row_mask:0xf", "row_ror:2 row_mask:0xf", "row_ror:1 row_mask:0xf",
                "row_bcast:15 row_mask:0xa", "row_bcast:31 row_mask:0xc"):
        for r in regs:
            k(f"v_add_f32 v{r}, v{r}, v{r} {ctl} bank_mask:0xf")

def cmul_pk(k, dre, dim, re, im, c, s, n, tmp, conj=False):
    neg = "neg_lo:[0,0,1] neg_hi:[0,0,1]"
    for i in range(0, n, 2):
        k(f"v_pk_mul_f32 {v(tmp+2*i,2)}, {v(im+i,2)}, {v(s+i,2)}")
        k(f"v_pk_mul_f32 {v(tmp+2*i+2,2)}, {v(re+i,2)}, {v(s+i,2)}")
    for i in range(0, n, 2):
        k(f"v_pk_fma_f32 {v(dre+i,2)}, {v(re+i,2)}, {v(c+i,2)}, {v(tmp+2*i,2)}" + ("" if conj else " " + neg))
        k(f"v_pk_fma_f32 {v(dim+i,2)}, {v(im+i,2)}, {v(c+i,2)}, {v(tmp+2*i+2,2)}" + (" " + neg if conj else ""))

U_OFF, FR_OFF, WDS_OFF, P1_LDS = 0, 10240, 10240 + 32*656, 10240 + 32*656 + 8192

def p1_issue(k, LB=0, cond=None):
    k("s_lshr_b32 s28, s2, 5", "s_and_b32 s29, s2, 31")
    k(f"s_lshr_b32 s30, s{S_W}, 1", f"s_and_b32 s31, s{S_W}, 1")
    k("s_lshl_b32 s32, s28, 7", f"s_lshl_b32 s33, s{S_W}, 5", "s_add_u32 s32, s32, s33", "s_add_u32 s32, s32, s29")
    k("s_mul_i32 s32, s32, 1280", "s_add_u32 s33, s32, 1310720")
    k("v_lshlrev_b32 v2, 2, v1", "v_lshlrev_b32 v3, 4, v1")
    for j in range(5): k(f"buffer_load_dword v{4+j}, v2, s[{SRD_X}:{SRD_X+3}], s32 offen offset:{256*j}")
    for j in range(5): k(f"buffer_load_dword v{9+j}, v2, s[{SRD_X}:{SRD_X+3}], s33 offen offset:{256*j}")
    if cond: k("@x")
    k("s_lshl_b32 s32, s28, 8", "s_lshl_b32 s33, s29, 1", "s_add_u32 s32, s32, s33", "s_add_u32 s32, s32, s30")
    k(f"s_mul_i32 s34, s{S_W}, {8*656}", f"s_add_u32 s34, s34, {LB+FR_OFF}")
    k("s_mov_b32 exec_lo, -1", "s_mov_b32 exec_hi, 0x1ff")
    for dm in range(2):
        for i in range(4):
            if dm == 0: k(f"s_add_u32 s33, s32, {64*i}")
            else: k(f"s_sub_u32 s33, {2048-64*i}, s32", "s_and_b32 s33, s33, 2047")
            k("s_mul_i32 s33, s33, 642", f"s_add_u32 m0, s34, {(4*dm+i)*656}", "s_and_b32 s33, s33, -16")
            k(f"buffer_load_dwordx4 v3, s[{SRD_F}:{SRD_F+3}], s33 offen lds")
    k("s_mov_b64 exec, -1")
    k("s_lshl_b32 s35, s2, 1", f"s_add_u32 s35, s35, s{S_W}", f"s_cmp_lt_u32 s{S_W}, 2", "s_cselect_b32 s35, s35, 480")
    k("s_cmp_ge_u32 s35, 480", "s_cbranch_scc1 L_p1_nowd")
    if cond: cond.cond = True
    k("s_mul_i32 s56, s35, 6554", "s_lshr_b32 s56, s56, 16", "s_mul_i32 s57, s56, 10", "s_sub_u32 s57, s35, s57")
    k("s_mul_i32 s33, s56, 40960", "s_lshl_b32 s34, s57, 7", "s_add_u32 s33, s33, s34")
    k("v_lshrrev_b32 v14, 3, v1", "v_mul_u32_u24 v14, 1280, v14", "v_and_b32 v15, 7, v1", "v_lshl_add_u32 v14, v15, 4, v14")
    k(f"s_lshl_b32 s34, s{S_W}, 12")
    for q in range(4):
        k(f"s_add_u32 m0, s34, {LB+WDS_OFF+1024*q}")
        if q: k("s_add_u32 s33, s33, 10240")
        k(f"buffer_load_dwordx4 v14, s[{SRD_WD}:{SRD_WD+3}], s33 offen lds")
    if cond: cond.cond = False
    k("L_p1_nowd:")

B1RE, B1IM, B2W, TWC, TWS = 40, 46, 52, 60, 76
def p1_consts(k):
    T = 92
    k(f"v_and_b32 v{T}, 15, v1", f"v_lshrrev_b32 v{T+1}, 4, v1")
    k(f"v_lshrrev_b32 v{T+2}, 2, v{T}", f"v_and_b32 v{T+3}, 3, v1", f"v_lshl_add_u32 v{T+2}, v{T+3}, 2, v{T+2}")
    k("s_mul_i32 s33, s31, 12", f"v_add_u32 v{T+2}, s33, v{T+2}", f"v_cvt_f32_u32 v{T+2}, v{T+2}")
    k(f"v_lshlrev_b32 v{T+3}, 2, v{T+1}", f"v_cvt_f32_u32 v{T+3}, v{T+3}")
    k(f"v_cvt_f32_u32 v{T+4}, v{T}")
    k(f"v_mul_f32 v{T+5}, {fbits(1/40)}, v{T+2}", f"v_mul_f32 v{T+6}, v{T+5}, v{T+3}")
    k(f"v_cmp_gt_u32 vcc, 2, v{T+1}")
    for jh in range(3):
        for r in range(4):
            k(f"v_fmamk_f32 v{T+8+r}, v{T+5}, {fbits(16*jh+r)}, v{T+6}")
        for r in range(4):
            k(f"v_cos_f32 v{T+12+r}, v{T+8+r}", f"v_sin_f32 v{T+8+r}, v{T+8+r}")
        for q in range(2):
            k(f"v_cvt_pk_bf16_f32 v{B1RE+2*jh+q}, v{T+12+2*q}, v{T+13+2*q}")
            k(f"v_cvt_pk_bf16_f32 v{B1IM+2*jh+q}, -v{T+8+2*q}, -v{T+9+2*q}")
    for q in range(2):
        k(f"v_cndmask_b32 v{B1RE+4+q}, 0, v{B1RE+4+q}, vcc", f"v_cndmask_b32 v{B1IM+4+q}, 0, v{B1IM+4+q}, vcc")
    k(f"v_mul_f32 v{T+5}, {fbits(1/16)}, v{T+4}", f"v_mul_f32 v{T+6}, v{T+5}, v{T+3}")
    for r in range(4): k(f"v_fmamk_f32 v{T+8+r}, v{T+5}, {fbits(r)}, v{T+6}")
    for r in range(4): k(f"v_cos_f32 v{T+12+r}, v{T+8+r}", f"v_sin_f32 v{T+8+r}, v{T+8+r}")
    for q in range(2):
        k(f"v_cvt_pk_bf16_f32 v{B2W+q}, -v{T+8+2*q}, -v{T+9+2*q}")
        k(f"v_cvt_pk_bf16_f32 v{B2W+2+q}, v{T+12+2*q}, v{T+13+2*q}")
        k(f"v_cvt_pk_bf16_f32 v{B2W+4+q}, v{T+8+2*q}, v{T+9+2*q}")
    k("s_lshl_b32 s33, s28, 7", "s_add_u32 s33, s33, s29", "s_mul_i32 s33, s33, s30", f"v_cvt_f32_u32 v{T+7}, s33", f"v_cvt_f32_u32 v{T+16}, s30")
    k(f"v_mul_f32 v{T+5}, {fbits(-1/640)}, v{T+2}", f"v_mul_f32 v{T+7}, {fbits(-1/2048)}, v{T+7}", f"v_fmac_f32 v{T+7}, v{T+5}, v{T+3}")
    for r in range(4): k(f"v_fmamk_f32 v{T+8+r}, v{T+5}, {fbits(r)}, v{T+7}")
    for j in range(4):
        for r in range(4):
            k(f"v_fmamk_f32 v{TWS+4*j+r}, v{T+16}, {fbits(-j/64)}, v{T+8+r}")
        for r in range(4):
            k(f"v_cos_f32 v{TWC+4*j+r}, v{TWS+4*j+r}", f"v_sin_f32 v{TWS+4*j+r}, v{TWS+4*j+r}")

def p1_body(k, LB=0, st="", hooks=None, cond=None):
    FA, FB = 16, 26
    if hooks: k(hooks['x'], *hooks['ln'])
    else:
        k("s_waitcnt vmcnt(8)")
        stamp(k, 3)
    for j in range(5):
        k(f"v_lshlrev_b32 v{FA+2*j}, 16, v{4+j}", f"v_and_b32 v{FA+2*j+1}, 0xffff0000, v{4+j}")
        k(f"v_lshlrev_b32 v{FB+2*j}, 16, v{9+j}", f"v_and_b32 v{FB+2*j+1}, 0xffff0000, v{9+j}")
    for (F, t) in ((FA, 4), (FB, 8)):
        k(f"v_pk_add_f32 {v(t,2)}, {v(F,2)}, {v(F+2,2)}", f"v_pk_add_f32 {v(t+2,2)}, {v(F+4,2)}, {v(F+6,2)}")
        k(f"v_pk_add_f32 {v(t,2)}, {v(t,2)}, {v(F+8,2)}", f"v_pk_add_f32 {v(t,2)}, {v(t,2)}, {v(t+2,2)}", f"v_add_f32 v{t}, v{t}, v{t+1}")
    wave_sum(k, (4, 8))
    k(f"v_mul_f32 v4, {fbits(1/640)}, v4", f"v_mul_f32 v8, {fbits(1/640)}, v8")
    k("v_readlane_b32 s58, v4, 63", "v_readlane_b32 s60, v8, 63")
    for (F, sm) in ((FA, 58), (FB, 60)):
        for j in range(5):
            k(f"v_pk_add_f32 {v(F+2*j,2)}, {v(F+2*j,2)}, s[{sm}:{sm+1}] op_sel_hi:[1,0] neg_lo:[0,1] neg_hi:[0,1]")
    for j in range(5):
        for (F, t) in ((FA, 4), (FB, 8)):
            if j == 0: k(f"v_pk_mul_f32 {v(t,2)}, {v(F,2)}, {v(F,2)}")
            else: k(f"v_pk_fma_f32 {v(t,2)}, {v(F+2*j,2)}, {v(F+2*j,2)}, {v(t,2)}")
    k("v_add_f32 v4, v4, v5", "v_add_f32 v8, v8, v9")
    wave_sum(k, (4, 8))
    k(f"v_mov_b32 v6, {fbits(1e-5)}")
    k(f"v_fmamk_f32 v4, v4, {fbits(1/640)}, v6", f"v_fmamk_f32 v8, v8, {fbits(1/640)}, v6")
    k("v_rsq_f32 v5, v4", "v_rsq_f32 v9, v8")
    k("v_readlane_b32 s59, v4, 63", "v_readlane_b32 s61, v8, 63", "v_readlane_b32 s62, v5, 63", "v_readlane_b32 s64, v9, 63")
    k(f"s_mul_i32 s33, s{S_W}, 1280", f"s_add_u32 s33, s33, {LB+U_OFF}", "v_add_u32 v14, s33, v2")
    for j in range(5): k(f"v_pk_mul_f32 {v(FB+2*j,2)}, {v(FB+2*j,2)}, s[64:65] op_sel_hi:[1,0]")
    for j in range(5):
        k(f"v_pk_fma_f32 {v(36,2)}, {v(FA+2*j,2)}, s[62:63], {v(FB+2*j,2)} op_sel_hi:[1,0,1]")
        k(f"v_pk_fma_f32 {v(38,2)}, {v(FA+2*j,2)}, s[62:63], {v(FB+2*j,2)} op_sel_hi:[1,0,1] neg_lo:[0,0,1] neg_hi:[0,0,1]")
        k(f"v_cvt_pk_bf16_f32 v{4+j}, v36, v37", f"v_cvt_pk_bf16_f32 v{9+j}, v38, v39")
        k(f"ds_write2st64_b32 v14, v{4+j}, v{9+j} offset0:{j} offset1:{20+j}")
    k("v_mov_b32 v16, s58", "v_mov_b32 v17, s59", "v_mov_b32 v18, s60", "v_mov_b32 v19, s61")
    k("s_lshl_b32 s33, s2, 6", f"s_lshl_b32 s34, s{S_W}, 4", "s_add_u32 s33, s33, s34", f"s_add_u32 s33, s33, {ST}")
    k("s_mov_b64 exec, 1", f"buffer_store_dwordx4 v[16:19], v2, s[{SRD_WS}:{SRD_WS+3}], s33 offen{st}", "s_mov_b64 exec, -1")
    k("s_mul_i32 s33, s30, 5120", f"s_add_u32 s33, s33, {LB+U_OFF}")
    k("v_lshl_add_u32 v20, v1, 3, s33", "v_and_b32 v21, 31, v1", "v_lshl_add_u32 v21, v21, 3, s33")
    k("v_and_b32 v28, 15, v1", "v_lshrrev_b32 v29, 4, v1")
    k("s_mul_i32 s33, s31, 12", "v_mul_u32_u24 v30, 40, v28", "v_add3_u32 v30, v30, v29, s33")
    k("s_lshl_b32 s33, s29, 1", "s_add_u32 s33, s33, s30", "s_sub_u32 s34, 0, s33", "s_and_b32 s33, s33, 7", "s_and_b32 s34, s34, 7")
    k("s_lshl_b32 s33, s33, 1", "s_lshl_b32 s34, s34, 1", f"s_mul_i32 s32, s30, {16*656}")
    k("s_add_u32 s33, s33, s32", "s_add_u32 s34, s34, s32", f"s_add_u32 s33, s33, {LB+FR_OFF}", f"s_add_u32 s34, s34, {LB+FR_OFF+4*656+1280}")
    k("v_bfrev_b32 v33, 1")
    for r in range(3):
        k(f"v_add_u32 v31, {4*r}, v30", "v_cmp_lt_u32 vcc, 320, v31", "v_lshlrev_b32 v31, 1, v31")
        k("v_add_u32 v32, s33, v31", "v_sub_u32 v31, s34, v31")
        k(f"v_cndmask_b32 v{22+r}, v32, v31, vcc", f"v_cndmask_b32 v{25+r}, 0, v33, vcc")
    k("s_mul_i32 s33, s30, 21", "s_mul_i32 s34, s31, 12", "s_add_u32 s33, s33, s34", "v_add_u32 v15, s33, v29", "v_lshlrev_b32 v15, 9, v15")
    k("v_lshrrev_b32 v31, 2, v28", "v_lshl_add_u32 v15, v31, 7, v15", "v_and_b32 v31, 3, v1", "v_lshl_add_u32 v15, v31, 4, v15")
    if hooks: k(hooks['bar'], "s_barrier")
    else:
        stamp(k, 4)
        k("s_waitcnt vmcnt(1) lgkmcnt(0)", "s_barrier")
        stamp(k, 5)
    A, D1, TMP, A2, D2, G = 92, 116, 4, 92, 116, 216
    for j in range(4):
        k(f"ds_read_b64_tr_b16 {v(A+6*j,2)}, v20 offset:{1280*j}", f"ds_read_b64_tr_b16 {v(A+6*j+2,2)}, v20 offset:{1280*j+512}",
          f"ds_read_b64_tr_b16 {v(A+6*j+4,2)}, v21 offset:{1280*j+1024}")
    for j in range(4):
        k(f"s_waitcnt lgkmcnt({9-3*j})")
        k(f"v_mfma_f32_16x16x32_bf16 {v(D1+8*j,4)}, {v(A+6*j,4)}, {v(B1RE,4)}, 0")
        k(f"v_mfma_f32_16x16x32_bf16 {v(D1+8*j+4,4)}, {v(A+6*j,4)}, {v(B1IM,4)}, 0")
        k(f"v_mfma_f32_16x16x16_bf16 {v(D1+8*j,4)}, {v(A+6*j+4,2)}, {v(B1RE+4,2)}, {v(D1+8*j,4)}")
        k(f"v_mfma_f32_16x16x16_bf16 {v(D1+8*j+4,4)}, {v(A+6*j+4,2)}, {v(B1IM+4,2)}, {v(D1+8*j+4,4)}")
    if hooks: k(*hooks['post'])
    def gather(r):
        for i in range(4):
            k(f"ds_read_u16 v{G+8*r+i}, v{22+r} offset:{i*656}", f"ds_read_u16 v{G+8*r+4+i}, v{22+r} offset:{(8+i)*656}")
    for j in range(4):
        if j < 3: gather(j)
        cmul_pk(k, D1+8*j, D1+8*j+4, D1+8*j, D1+8*j+4, TWC+4*j, TWS+4*j, 4, TMP)
        for q in range(4): k(f"v_cvt_pk_bf16_f32 v{A2+4*j+q}, v{D1+8*j+2*q}, v{D1+8*j+2*q+1}")
        k(f"v_mfma_f32_16x16x32_bf16 {v(D2+8*j,4)}, {v(A2+4*j,4)}, {v(B2W+2,4)}, 0")
        k(f"v_mfma_f32_16x16x32_bf16 {v(D2+8*j+4,4)}, {v(A2+4*j,4)}, {v(B2W,4)}, 0")
        if j < 3:
            k("s_waitcnt lgkmcnt(0)")
            for i in range(4):
                k(f"v_lshl_or_b32 v{G+8*j+i}, v{G+8*j+4+i}, 16, v{G+8*j+i}", f"v_xor_b32 v{G+8*j+i}, v{G+8*j+i}, v{25+j}")
    k(f"s_mul_i32 s33, s2, {XW_BLK}", "s_cmp_eq_u32 s31, 0", "s_cselect_b64 s[66:67], -1, 0xffff")
    for r in range(3):
        O = 40 + 4*r
        k(f"v_cvt_pk_bf16_f32 v{O}, v{D2+r}, v{D2+8+r}", f"v_cvt_pk_bf16_f32 v{O+1}, v{D2+16+r}, v{D2+24+r}")
        k(f"v_cvt_pk_bf16_f32 v{O+2}, v{D2+4+r}, v{D2+12+r}", f"v_cvt_pk_bf16_f32 v{O+3}, v{D2+20+r}, v{D2+28+r}")
        if r == 2: k("s_mov_b64 exec, s[66:67]")
        k(f"buffer_store_dwordx4 {v(O,4)}, v15, s[{SRD_WS}:{SRD_WS+3}], s33 offen{st}")
        k(f"buffer_store_dwordx4 {v(G+8*r,4)}, v15, s[{SRD_WS}:{SRD_WS+3}], s33 offen offset:64{st}")
        if r < 2: k("s_add_u32 s33, s33, 2048")
    k("s_mov_b64 exec, -1")
    k("s_cmp_ge_u32 s35, 480", "s_cbranch_scc1 L_p1_nowd2")
    if cond: cond.cond = True
    k("v_lshrrev_b32 v20, 5, v1", "v_bfe_u32 v21, v1, 2, 3", "v_lshl_add_u32 v20, v20, 4, v21", "v_lshlrev_b32 v20, 7, v20")
    k("v_and_b32 v21, 3, v1", "v_lshl_add_u32 v20, v21, 3, v20", f"s_lshl_b32 s33, s{S_W}, 12", f"s_add_u32 s33, s33, {LB+WDS_OFF}", "v_add_u32 v20, s33, v20")
    for m in range(4):
        for mm in range(2):
            k(f"ds_read_b64_tr_b16 {v(D1+4*m+2*mm,2)}, v20 offset:{32*m+1024*mm}")
    k("s_and_b32 s33, s57, 1", f"s_mul_i32 s33, s33, {4*240}", "s_mul_i32 s34, s56, 5", "s_add_u32 s33, s33, s34", "s_lshr_b32 s34, s57, 1", "s_add_u32 s33, s33, s34")
    k("s_lshl_b32 s33, s33, 10", f"s_add_u32 s33, s33, {WD}")
    for m in range(4):
        k(f"s_waitcnt lgkmcnt({6-2*m})")
        k(f"buffer_store_dwordx4 {v(D1+4*m,4)}, v3, s[{SRD_WS}:{SRD_WS+3}], s33 offen{st}")
        if m < 3: k(f"s_add_u32 s33, s33, {240*1024}")
    if cond: cond.cond = False
    k("L_p1_nowd2:")

def k1_kernel():
    k = Asm()
    prologue(k, 256, "L_k1_end")
    build_srds(k)
    stamp(k, 0)
    p1_issue(k)
    stamp(k, 1)
    p1_consts(k)
    stamp(k, 2)
    p1_body(k)
    stamp(k, 6)
    stamp_end(k, 0, 7)
    k("L_k1_end:", "s_endpgm")
    return kernel("k1_kernel", k.text(), vgpr=256), f"; @launch kernel=k1_kernel grid=(256,1,1) block=(256,1,1) lds={P1_LDS}\n"
if __name__ == "__main__":
    body, hdr = k1_kernel()
    open("k1.s", "w").write(hdr + TARGET + body)
```

```python
from common import *

SLOT = 40992
XO, GO, UO = 0, 16384, 16384 + 12288 + 32
ACC = 4
FB = 100
AX, AW = 140, 144
DX, DW = 146, 150
CS = 153
STT = 156
TT = 160
S_RB, S_CB, S_CI, S_XB, S_WB, S_SL, S_IT, S_D0, S_ONE, S_MX, S_MW = 68, 69, 70, 71, 72, 73, 74, 75, 76, 77, 78

def p2_setup(k):
    k("s_and_b32 s33, s2, 7", "s_lshr_b32 s34, s2, 3")
    k(f"s_and_b32 s{S_RB}, s33, 1", f"s_lshl_b32 s{S_RB}, s{S_RB}, 3", "s_lshr_b32 s32, s34, 2", f"s_add_u32 s{S_RB}, s{S_RB}, s32")
    k(f"s_lshr_b32 s{S_CB}, s33, 1", f"s_lshl_b32 s{S_CB}, s{S_CB}, 2", "s_and_b32 s34, s34, 3", f"s_add_u32 s{S_CB}, s{S_CB}, s34")
    k("s_lshl_b32 s34, s34, 1", "s_add_u32 s34, s34, s32", "s_mul_i32 s34, s34, 5", "s_lshr_b32 s34, s34, 2")
    k("s_sub_u32 s33, s34, 10", "s_cmp_ge_u32 s34, 10", f"s_cselect_b32 s{S_CI}, s33, s34")
    k(f"s_lshl_b32 s33, s{S_RB}, 1", f"s_and_b32 s34, s{S_W}, 1", "s_add_u32 s33, s33, s34", f"s_lshr_b32 s32, s{S_W}, 1", "s_lshl_b32 s32, s32, 5", "s_add_u32 s33, s33, s32")
    k(f"s_mul_i32 s{S_XB}, s33, {32*1280}")
    k(f"s_mul_i32 s{S_WB}, s{S_CB}, 192", f"s_mul_i32 s34, s34, {32*3072}", f"s_add_u32 s{S_WB}, s{S_WB}, s34")
    k(f"s_lshl_b32 s{S_MX}, s{S_W}, 12")
    k(f"s_and_b32 s34, s{S_W}, 1", "s_mul_i32 s34, s34, 6144", f"s_lshr_b32 s33, s{S_W}, 1", f"s_mul_i32 s33, s33, {UO-GO}", "s_add_u32 s33, s33, s34", f"s_add_u32 s{S_MW}, s33, {GO}")
    t = TT
    k(f"v_lshrrev_b32 v{t}, 3, v1", f"v_mul_u32_u24 v{t}, 1280, v{t}", f"v_lshrrev_b32 v{t+1}, 4, v1", f"v_xor_b32 v{t+1}, v{t+1}, v1", f"v_and_b32 v{t+1}, 7, v{t+1}")
    k(f"v_lshl_add_u32 v{DX}, v{t+1}, 4, v{t}", f"v_xor_b32 v{t}, 64, v{DX}")
    k(f"v_add_u32 v{DX+1}, {10240-1024}, v{t}", f"v_add_u32 v{DX+2}, {2*(10240-1024)}, v{DX}", f"v_add_u32 v{DX+3}, {3*(10240-1024)}, v{t}")
    for q in range(3):
        k(f"v_add_u32 v{t}, {64*q}, v1", f"v_mul_u32_u24 v{t+1}, 0x5556, v{t}", f"v_lshrrev_b32 v{t+1}, 18, v{t+1}")
        k(f"v_mul_u32_u24 v{t+1}, {3072-192}, v{t+1}", f"v_lshl_add_u32 v{DW+q}, v1, 4, v{t+1}")
    k(f"s_mov_b32 s{S_ONE}, 0x3f803f80")

def dma_x(k, slot_s):
    out = [f"s_add_u32 m0, s{S_MX}, {slot_s}", f"s_lshl_b32 s33, s{S_CI}, 7", f"s_add_u32 s33, s33, s{S_XB}"]
    out += [f"buffer_load_dwordx4 v{DX+q}, s[{SRD_X}:{SRD_X+3}], s33 offen offset:{1024*q} lds" for q in range(4)]
    return out
def dma_w(k, slot_s, half):
    if half == 0: out = [f"s_add_u32 m0, s{S_MW}, {slot_s}", f"s_mul_i32 s34, s{S_CI}, {64*3072}", f"s_add_u32 s34, s34, s{S_WB}"]
    else: out = ["s_add_u32 m0, m0, 3072", f"s_add_u32 s34, s34, {16*3072}"]
    out += [f"buffer_load_dwordx4 v{DW+q}, s[{SRD_W}:{SRD_W+3}], s34 offen offset:{1024*q} lds" for q in range(3)]
    return out
def next_ci(k):
    return [f"s_add_u32 s{S_CI}, s{S_CI}, 1", f"s_cmp_eq_u32 s{S_CI}, 10", f"s_cselect_b32 s{S_CI}, 0, s{S_CI}"]
def dma_chunk(k, slot_s):
    k(*dma_x(k, slot_s), *dma_w(k, slot_s, 0), *dma_w(k, slot_s, 1), *next_ci(k))

def p2_addr(k):
    t = TT
    k(f"s_lshr_b32 s33, s{S_W}, 1", f"s_and_b32 s34, s{S_W}, 1")
    k(f"v_and_b32 v{t}, 31, v1", f"v_lshlrev_b32 v{t}, 7, v{t}", "s_lshl_b32 s32, s33, 13", f"v_add_u32 v{t}, s32, v{t}")
    k(f"v_bfe_u32 v{t+1}, v1, 1, 3", f"v_lshrrev_b32 v{t+2}, 5, v1", f"v_xor_b32 v{t+1}, v{t+1}, v{t+2}", "s_lshl_b32 s32, s33, 1", f"v_xor_b32 v{t+1}, s32, v{t+1}")
    k(f"v_lshl_add_u32 v{AX}, v{t+1}, 4, v{t}")
    for s_ in range(1, 4): k(f"v_xor_b32 v{AX+s_}, {32*s_}, v{AX}")
    k(f"v_bfe_u32 v{t}, v1, 4, 1", f"v_mul_u32_u24 v{t}, {UO-GO}, v{t}")
    k(f"v_bfe_u32 v{t+1}, v1, 2, 2", f"v_lshl_add_u32 v{t+1}, v{t+2}, 3, v{t+1}", f"v_mul_u32_u24 v{t+1}, 192, v{t+1}")
    k(f"v_and_b32 v{t+2}, 3, v1", f"v_lshlrev_b32 v{t+2}, 3, v{t+2}", f"v_add3_u32 v{t}, v{t}, v{t+1}, v{t+2}")
    k("s_mul_i32 s34, s34, 96", f"s_add_u32 s34, s34, {GO}", "s_mul_i32 s33, s33, 3072", "s_add_u32 s32, s34, s33", "s_sub_u32 s34, s34, s33")
    k(f"v_add_u32 v{AW}, s32, v{t}", f"v_add_u32 v{AW+1}, s34, v{t}")
    for i in range(96): k(f"v_mov_b32 v{ACC+i}, 0")
    for i in range(3): k(f"v_mov_b32 v{CS+i}, 0")

def reads(s_, buf):
    b = FB + 20*buf
    out = [f"ds_read_b128 {v(b,4)}, v{AX+s_}"]
    w = lambda ph, m: f"ds_read_b64_tr_b16 {v(b+8+4*ph+2*m,2)}, v{AW+(s_&1)} offset:{(16*s_+4*m)*192+32*ph}"
    out += [w(0, 0), w(0, 1), f"ds_read_b128 {v(b+4,4)}, v{AX+s_} offset:4096", w(1, 0), w(1, 1), w(2, 0), w(2, 1)]
    return out
def mfmas(buf):
    b = FB + 20*buf
    return [f"v_mfma_f32_32x32x16_bf16 {v(ACC+16*(2*ph+tt),16)}, {v(b+8+4*ph,4)}, {v(b+4*tt,4)}, {v(ACC+16*(2*ph+tt),16)}" for ph in range(3) for tt in range(2)]
def dots(buf):
    b = FB + 20*buf
    return [f"v_dot2c_f32_bf16 v{CS+ph}, s{S_ONE}, v{b+8+4*ph+j}" for j in range(4) for ph in range(3)]
def weave(k, mf, fill):
    n = len(mf); m = len(fill); j = 0
    for i in range(n):
        k(mf[i])
        e = (m*(i+1) + n - 1)//n
        k(*fill[j:e]); j = max(j, e)

def p2_loop(k, tag="p2"):
    k(f"s_mov_b32 s{S_IT}, 0", f"s_mov_b32 s{S_SL}, {2*SLOT}")
    k("s_waitcnt vmcnt(20)", "s_barrier")
    stamp(k, 2)
    k(*reads(0, 0))
    k(f"s_branch L_{tag}_in")
    k(f"L_{tag}_top:")
    k(f"s_cmp_ge_u32 s{S_IT}, 8", f"s_cbranch_scc1 L_{tag}_nodma")
    weave(k, mfmas(1), reads(0, 0) + dma_x(k, f"s{S_SL}") + dma_w(k, f"s{S_SL}", 0)[:4])
    k("s_waitcnt lgkmcnt(0)")
    weave(k, mfmas(0), reads(1, 1) + dots(0))
    k("s_waitcnt lgkmcnt(0)")
    weave(k, mfmas(1), reads(2, 0) + dma_w(k, f"s{S_SL}", 0)[4:] + dma_w(k, f"s{S_SL}", 1) + next_ci(k))
    k(f"s_branch L_{tag}_q3")
    k(f"L_{tag}_nodma:")
    weave(k, mfmas(1), reads(0, 0))
    k(f"L_{tag}_in:")
    k("s_waitcnt lgkmcnt(0)")
    weave(k, mfmas(0), reads(1, 1) + dots(0))
    k("s_waitcnt lgkmcnt(0)")
    weave(k, mfmas(1), reads(2, 0))
    k(f"L_{tag}_q3:")
    k("s_waitcnt lgkmcnt(0)")
    upd = [f"s_add_u32 s{S_SL}, s{S_SL}, {SLOT}", f"s_cmp_eq_u32 s{S_SL}, {3*SLOT}", f"s_cselect_b32 s{S_SL}, 0, s{S_SL}",
           f"s_mov_b32 s{S_D0}, {SLOT}", f"s_cmp_eq_u32 s{S_SL}, {2*SLOT}", f"s_cselect_b32 s{S_D0}, {-2*SLOT}, s{S_D0}"]
    upd2 = [f"v_add_u32 v{AX+i}, s{S_D0}, v{AX+i}" for i in range(6)]
    weave(k, mfmas(0), reads(3, 1) + upd + dots(0) + upd2)
    k(f"s_add_u32 s{S_IT}, s{S_IT}, 1", f"s_cmp_eq_u32 s{S_IT}, 10", f"s_cbranch_scc1 L_{tag}_done")
    k(f"s_cmp_eq_u32 s{S_IT}, 9", f"s_cbranch_scc1 L_{tag}_last")
    k("s_waitcnt vmcnt(10) lgkmcnt(0)", "s_barrier", f"s_branch L_{tag}_top")
    k(f"L_{tag}_last:", "s_waitcnt vmcnt(0) lgkmcnt(0)", "s_barrier", f"s_branch L_{tag}_nodma")
    k(f"L_{tag}_done:")

def p2_stats_load(k, ld=""):
    t = TT
    k(f"v_and_b32 v{t}, 31, v1", f"v_lshlrev_b32 v{t}, 6, v{t}")
    k(f"s_lshr_b32 s33, s{S_RB}, 1", "s_lshl_b32 s33, s33, 11", f"s_and_b32 s34, s{S_RB}, 1", "s_lshl_b32 s34, s34, 5", "s_add_u32 s33, s33, s34")
    k(f"s_lshr_b32 s34, s{S_W}, 1", "s_lshl_b32 s34, s34, 3", "s_add_u32 s33, s33, s34", f"s_add_u32 s33, s33, {ST}")
    for tt in range(2): k(f"buffer_load_dwordx2 {v(STT+2*tt,2)}, v{t}, s[{SRD_WS}:{SRD_WS+3}], s33 offen offset:{16*tt}{ld}")

def p2_epilogue(k, LX, st=""):
    t = TT
    k(f"v_lshlrev_b32 v{t}, 2, v0", f"v_add_u32 v{t}, {LX}, v{t}", f"v_xor_b32 v{t+1}, 128, v0", f"v_lshlrev_b32 v{t+1}, 2, v{t+1}", f"v_add_u32 v{t+1}, {LX}, v{t+1}")
    for ph in range(3): k(f"ds_write_b32 v{t}, v{CS+ph} offset:{1024*ph}")
    k("s_waitcnt lgkmcnt(0)", "s_barrier")
    fill = [f"ds_read_b32 v{t+2+ph}, v{t+1} offset:{1024*ph}" for ph in range(3)]
    BM, AMC, CR = t+6, t+10, t+16
    for tt in range(2):
        m = STT+2*tt
        fill += [f"v_cvt_pk_bf16_f32 v{BM+2*tt}, -v{m}, -v{m}", f"v_lshlrev_b32 v{BM+2*tt+1}, 16, v{BM+2*tt}",
                 f"v_add_f32 v{BM+2*tt+1}, v{m}, v{BM+2*tt+1}", f"v_cvt_pk_bf16_f32 v{BM+2*tt+1}, -v{BM+2*tt+1}, -v{BM+2*tt+1}",
                 f"v_rsq_f32 v{m}, v{m+1}"]
    fill += ["s_waitcnt lgkmcnt(0)"]
    for ph in range(3):
        c = CS+ph; A = AMC+2*ph
        fill += [f"v_add_f32 v{c}, v{c}, v{t+2+ph}", f"v_cvt_pk_bf16_f32 v{A}, v{c}, v{c}", f"v_lshlrev_b32 v{A}, 16, v{A}",
                 f"v_sub_f32 v{A}, v{c}, v{A}", f"v_cvt_pk_bf16_f32 v{A}, v{c}, v{A}", f"v_mov_b32 v{A+1}, v{A}"]
    weave(k, mfmas(1), fill)
    mf = [f"v_mfma_f32_32x32x8_bf16 {v(ACC+16*(2*ph+tt),16)}, {v(AMC+2*ph,2)}, {v(BM+2*tt,2)}, {v(ACC+16*(2*ph+tt),16)}" for ph in range(3) for tt in range(2)]
    fill = [f"v_mul_f32 v{STT+2*tt}, {fbits(-math.log2(math.e))}, v{STT+2*tt}" for tt in range(2)]
    fill += [f"v_bfe_u32 v{t}, v1, 4, 1", f"v_mul_u32_u24 v{t}, 49152, v{t}", f"v_lshrrev_b32 v{t+1}, 5, v1", f"v_lshl_add_u32 v{t}, v{t+1}, 8, v{t}",
             f"v_and_b32 v{t+1}, 15, v1", f"v_lshl_add_u32 v{t}, v{t+1}, 4, v{t}"]
    fill += [f"s_lshr_b32 s33, s{S_W}, 1", "s_lshl_b32 s33, s33, 4", f"s_add_u32 s33, s33, s{S_RB}", f"s_mul_i32 s33, s33, {4*49152}",
             f"s_and_b32 s34, s{S_W}, 1", f"s_lshl_b32 s32, s{S_CB}, 1", "s_add_u32 s34, s34, s32", "s_mul_i32 s34, s34, 1536", "s_add_u32 s33, s33, s34",
             f"s_add_u32 s33, s33, {H}", f"s_add_u32 s34, s33, {2*49152}"]
    weave(k, mf, fill)
    E = FB
    for ph in range(3):
        for tt in range(2):
            a = ACC+16*(2*ph+tt); e = E + 8*((2*ph+tt) & 1); st_ = v(STT+2*tt, 2)
            for i in range(0, 8, 2): k(f"v_pk_mul_f32 {v(e+i,2)}, {v(a+i,2)}, {st_} op_sel_hi:[1,0]")
            for i in range(8): k(f"v_exp_f32 v{e+i}, v{e+i}")
            for i in range(0, 8, 2): k(f"v_pk_mul_f32 {v(a+i,2)}, {v(a+i,2)}, {v(a+8+i,2)}")
            for i in range(0, 8, 2): k(f"v_pk_fma_f32 {v(e+i,2)}, {v(e+i,2)}, {st_}, {st_} op_sel:[0,1,1] op_sel_hi:[1,1,1]")
            for i in range(8): k(f"v_rcp_f32 v{e+i}, v{e+i}")
            for i in range(0, 8, 2): k(f"v_pk_mul_f32 {v(a+i,2)}, {v(a+i,2)}, {v(e+i,2)}")
            for i in range(4): k(f"v_cvt_pk_bf16_f32 v{a+8+i}, v{a+2*i}, v{a+2*i+1}")
            k(f"buffer_store_dwordx4 {v(a+8,4)}, v{t}, s[{SRD_WS}:{SRD_WS+3}], s{33+tt} offen offset:{512*ph}{st}")

def k2_kernel():
    k = Asm()
    prologue(k, 256, "L_k2_end")
    p2_setup(k)
    build_srds(k)
    stamp(k, 0)
    p2_stats_load(k)
    for i in range(3): dma_chunk(k, i*SLOT)
    stamp(k, 1)
    p2_addr(k)
    p2_loop(k)
    stamp(k, 3)
    p2_epilogue(k, 3*SLOT)
    stamp(k, 4)
    stamp_end(k, 1, 5)
    k("L_k2_end:", "s_endpgm")
    return kernel("k2_kernel", k.text(), vgpr=256), f"; @launch kernel=k2_kernel grid=(256,1,1) block=(256,1,1) lds={3*SLOT+3072}\n"
if __name__ == "__main__":
    from p1 import k1_kernel
    b1, h1 = k1_kernel(); b2, h2 = k2_kernel()
    open("k12.s", "w").write(h1 + h2 + TARGET + b1 + b2)
```

```python
from common import *
from p1 import cmul_pk

P3C_BYTES = 3*6144 + 8192
def p3_gen_consts(k, LC, sE, T):
    k(f"s_mov_b32 s33, {fbits(-1/32)}", f"s_cmp_eq_u32 s{S_W}, 3", f"s_cselect_b32 s33, {fbits(-1/1024)}, s33")
    k(f"s_cmp_eq_u32 s{S_W}, 1", f"s_cselect_b32 s34, {fbits(-1/2048)}, 0", f"s_cmp_eq_u32 s{S_W}, 2", f"s_cselect_b32 s34, {fbits(-1/64)}, s34")
    k(f"s_cmp_eq_u32 s{sE}, 0", "s_cselect_b32 s34, 0, s34")
    k(f"v_and_b32 v{T}, 31, v1", f"v_cvt_f32_u32 v{T}, v{T}", f"v_lshrrev_b32 v{T+1}, 5, v1", f"v_lshlrev_b32 v{T+1}, 2, v{T+1}", f"v_cvt_f32_u32 v{T+1}, v{T+1}")
    k(f"v_mul_f32 v{T+2}, s33, v{T}", f"v_mul_f32 v{T+3}, s34, v{T}", f"v_fmac_f32 v{T+3}, v{T+2}, v{T+1}")
    C, S_ = T+4, T+20
    for r in range(16): k(f"v_fmamk_f32 v{S_+r}, v{T+2}, {fbits(8*(r>>2)+(r&3))}, v{T+3}")
    for r in range(16): k(f"v_cos_f32 v{C+r}, v{S_+r}", f"v_sin_f32 v{S_+r}, v{S_+r}")
    k(f"s_mul_i32 s33, s{S_W}, 6144", f"s_add_u32 s33, s33, {LC}", f"v_lshl_add_u32 v{T}, v1, 4, s33")
    k(f"s_cmp_eq_u32 s{S_W}, 3", "s_cbranch_scc1 L_p3c_tw")
    O = T+36
    for half in range(2):
        for s2 in range(2):
            r = 8*half + 4*s2
            for q in range(2):
                k(f"v_cvt_pk_bf16_f32 v{O+6*s2+q}, v{S_+r+2*q}, v{S_+r+2*q+1}")
                k(f"v_cvt_pk_bf16_f32 v{O+6*s2+2+q}, v{C+r+2*q}, v{C+r+2*q+1}")
                k(f"v_cvt_pk_bf16_f32 v{O+6*s2+4+q}, -v{S_+r+2*q}, -v{S_+r+2*q+1}")
        for q in range(3): k(f"ds_write_b128 v{T}, {v(O+4*q,4)} offset:{1024*(3*half+q)}")
    k("s_branch L_p3c_done", "L_p3c_tw:")
    for q in range(8): k(f"ds_write_b128 v{T}, {v(C+4*q,4)} offset:{1024*q}")
    k("L_p3c_done:")

def p3_load_consts(k, LC, AM, VTW, T):
    k(f"v_lshlrev_b32 v{T}, 4, v1", f"v_add_u32 v{T}, {LC}, v{T}")
    for q in range(18):
        k(f"ds_read_b128 {a_(AM+4*q,4)}, v{T} offset:{1024*q}")
        if q % 8 == 7: k("s_waitcnt lgkmcnt(4)")
    for q in range(8): k(f"ds_read_b128 {v(VTW+4*q,4)}, v{T} offset:{18432+1024*q}")

def p3_issue(k, LG, sP, T, ld=""):
    k(f"v_lshrrev_b32 v{T}, 3, v1", f"v_mul_u32_u24 v{T}, {XW_BLK}, v{T}", f"v_lshrrev_b32 v{T+1}, 4, v1", f"v_xor_b32 v{T+1}, v{T+1}, v1", f"v_and_b32 v{T+1}, 7, v{T+1}")
    k(f"v_lshl_add_u32 v{T}, v{T+1}, 4, v{T}", f"v_xor_b32 v{T+1}, 64, v{T}")
    k(f"s_mul_i32 s33, s{S_W}, {64*XW_BLK}", f"s_lshl_b32 s34, s{sP}, 7", "s_add_u32 s33, s33, s34", f"s_lshl_b32 s34, s{S_W}, 13")
    for q in range(8):
        k(f"s_add_u32 m0, s34, {LG+1024*q}")
        if q: k(f"s_add_u32 s33, s33, {8*XW_BLK}")
        k(f"buffer_load_dwordx4 v{T+(q&1)}, s[{SRD_WS}:{SRD_WS+3}], s33 offen{ld} lds")

def p3_body(k, LG, LO, sP, sE, AM, VTW, B, st="", wq=None, mid=None, late=None):
    X, WF, D0, D1, TMP, WU, AD = B, B+16, B+32, B+64, B+96, B+104, B+112
    TC, TS = VTW, VTW+16
    k(f"v_bfe_u32 v{AD}, v1, 1, 3", f"v_xor_b32 v{AD}, s{S_W}, v{AD}", f"v_lshlrev_b32 v{AD}, 4, v{AD}", f"v_lshl_add_u32 v{AD}, v1, 7, v{AD}", f"v_xor_b32 v{AD+1}, 64, v{AD}")
    k(f"v_add_u32 v{AD}, {LG}, v{AD}", f"v_add_u32 v{AD+1}, {LG}, v{AD+1}")
    for s_ in range(4): k(f"ds_read_b128 {v(X+4*s_,4)}, v{AD} offset:{8192*s_}")
    for s_ in range(4): k(f"ds_read_b128 {v(WF+4*s_,4)}, v{AD+1} offset:{8192*s_}")
    def mm(D, data, M, s_, dataA, inv):
        wre, wim = (a_(M+6*s_,4), a_(M+6*s_+2,4)) if inv else (a_(M+6*s_+2,4), a_(M+6*s_,4))
        for (d, w) in ((D, wre), (D+16, wim)):
            A_, B_ = (v(data,4), w) if dataA else (w, v(data,4))
            k(f"v_mfma_f32_32x32x16_bf16 {v(d,16)}, {A_}, {B_}, {v(d,16) if s_ else 0}")
            if wq: k(*wq.pop(0))
    def pack(dst, D, s_, swap):
        lo, hi = (D+16, D) if swap else (D, D+16)
        for q in range(2): k(f"v_cvt_pk_bf16_f32 v{dst+q}, v{lo+4*s_+2*q}, v{lo+4*s_+2*q+1}")
        for q in range(2): k(f"v_cvt_pk_bf16_f32 v{dst+2+q}, v{hi+4*s_+2*q}, v{hi+4*s_+2*q+1}")
    for s_ in range(4):
        k(f"s_waitcnt lgkmcnt({7-s_})")
        mm(D0, X+4*s_, AM, s_, True, False)
    k(f"v_and_b32 v{AD+2}, 31, v1", f"v_lshrrev_b32 v{AD+3}, 5, v1", f"v_lshlrev_b32 v{AD+3}, 9, v{AD+3}", f"v_lshl_add_u32 v{AD+2}, v{AD+2}, 2, v{AD+3}")
    k(f"s_lshl_b32 s33, s{S_W}, 12", f"s_add_u32 s33, s33, {LO}", f"v_add_u32 v{AD+2}, s33, v{AD+2}", f"v_add_u32 v{AD+3}, 128, v{AD+2}")
    k(f"s_lshl_b32 s33, s{S_W}, 10", f"s_add_u32 s33, s33, {LO}", f"v_lshl_add_u32 v{AD+4}, v1, 2, s33")
    k(f"v_lshrrev_b32 v{AD+5}, 4, v1", f"v_mul_u32_u24 v{AD+5}, 21504, v{AD+5}", f"v_and_b32 v{AD+6}, 15, v1", f"v_lshl_add_u32 v{AD+5}, v{AD+6}, 4, v{AD+5}")
    for s_ in range(4):
        cmul_pk(k, D0+4*s_, D0+16+4*s_, D0+4*s_, D0+16+4*s_, TC+4*s_, TS+4*s_, 4, TMP)
        pack(X+4*s_, D0, s_, False)
        mm(D1, X+4*s_, AM, s_, False, False)
    k("s_waitcnt lgkmcnt(0)")
    for s_ in range(4):
        for i in range(4):
            k(f"v_lshlrev_b32 v{WU+i}, 16, v{WF+4*s_+i}", f"v_and_b32 v{WF+4*s_+i}, 0xffff0000, v{WF+4*s_+i}")
        cmul_pk(k, D1+4*s_, D1+16+4*s_, D1+4*s_, D1+16+4*s_, WU, WF+4*s_, 4, TMP)
        pack(X+4*s_, D1, s_, True)
        mm(D0, X+4*s_, AM+24, s_, True, True)
    if mid: mid()
    for s_ in range(4):
        cmul_pk(k, D0+4*s_, D0+16+4*s_, D0+4*s_, D0+16+4*s_, TC+4*s_, TS+4*s_, 4, TMP, conj=True)
        pack(X+4*s_, D0, s_, True)
        mm(D1, X+4*s_, AM+48, s_, False, True)
    if late: late()
    else: stamp(k, 4)
    assert not wq
    k(f"s_lshl_b32 s33, s{sE}, 2", f"s_add_u32 s33, s33, s{S_W}", f"s_mul_i32 s33, s33, {16*21504}", f"s_mul_i32 s34, s{sE}, 84", f"s_sub_u32 s34, s{sP}, s34")
    k("s_lshl_b32 s34, s34, 8", "s_add_u32 s33, s33, s34", f"s_add_u32 s33, s33, {Y}")
    for s_ in range(4):
        for j in range(4): k(f"v_cvt_pk_bf16_f32 v{WF+4*s_+j}, v{D1+4*s_+j}, v{D1+16+4*s_+j}")
        for j in range(2): k(f"ds_write2st64_b32 v{AD+2+j}, v{WF+4*s_+j}, v{WF+4*s_+j+2} offset0:{4*s_} offset1:{4*s_+1}")
    k("s_waitcnt lgkmcnt(0)", "s_barrier")
    for u in range(4):
        k(f"ds_read2st64_b32 {v(X+4*u,2)}, v{AD+4} offset0:{u} offset1:{16+u}", f"ds_read2st64_b32 {v(X+4*u+2,2)}, v{AD+4} offset0:{32+u} offset1:{48+u}")
    for u in range(4):
        k(f"s_waitcnt lgkmcnt({6-2*u})")
        k(f"buffer_store_dwordx4 {v(X+4*u,4)}, v{AD+5}, s[{SRD_WS}:{SRD_WS+3}], s33 offen{st}")
        if u < 3: k(f"s_add_u32 s33, s33, {4*21504}")

def k3_kernel():
    k = Asm()
    prologue(k, 168, "L_k3_end")
    build_srds(k)
    LG, LC, LO = 0, 32768, 32768 + P3C_BYTES
    k("s_cmp_ge_u32 s2, 84", "s_cselect_b32 s30, 1, 0")
    stamp(k, 0)
    p3_issue(k, LG, 2, 4)
    p3_gen_consts(k, LC, 30, 8)
    stamp(k, 1)
    k("s_waitcnt vmcnt(0) lgkmcnt(0)", "s_barrier")
    stamp(k, 2)
    p3_load_consts(k, LC, 0, 8, 4)
    k("s_waitcnt lgkmcnt(0)")
    stamp(k, 3)
    p3_body(k, LG, LO, 2, 30, 0, 8, 40)
    stamp(k, 5)
    stamp_end(k, 2, 6)
    k("L_k3_end:", "s_endpgm")
    return kernel("k3_kernel", k.text(), vgpr=256+72, accum=256), f"; @launch kernel=k3_kernel grid=(168,1,1) block=(256,1,1) lds={LO+16384}\n"
if __name__ == "__main__":
    from p1 import k1_kernel
    b1, h1 = k1_kernel(); b3, h3 = k3_kernel()
    open("k13.s", "w").write(h1 + h3 + TARGET + b1 + b3)
```

```python
from common import *

P5C_BYTES = 37*1024
S_B32, S_BETA, S_ST, S_WO, S_HO = 80, 81, 82, 83, 84
def cls(k1):
    rho = k1 % 5
    return {0: (0, None, 1), 1: (1, 2, 1), 4: (1, 2, -1), 2: (3, 4, 1), 3: (3, 4, -1)}[rho]
FRAG = {}
_n = 0
for _k in range(21):
    FRAG[_k] = _n; _n += 1 if cls(_k)[1] is None else 2

def p4_ids(k):
    k("s_and_b32 s33, s2, 7", "s_lshr_b32 s34, s2, 3", f"s_and_b32 s{S_BETA}, s34, 7", "s_lshr_b32 s34, s34, 3", "s_lshl_b32 s33, s33, 2", f"s_add_u32 s{S_B32}, s33, s34")
    k(f"s_mul_i32 s33, s{S_BETA}, 3", "s_lshr_b32 s33, s33, 1", "s_mul_i32 s34, s34, 3", "s_add_u32 s33, s33, s34", "s_sub_u32 s34, s33, 12", "s_cmp_ge_u32 s33, 12", f"s_cselect_b32 s{S_ST}, s34, s33")
    k(f"s_lshl_b32 s33, s{S_BETA}, 2", f"s_add_u32 s33, s33, s{S_W}", f"s_mul_i32 s33, s33, {12*5120}", f"s_add_u32 s{S_WO}, s33, {WD}")
    k(f"s_mul_i32 s33, s{S_B32}, {2*49152}", f"s_mul_i32 s34, s{S_W}, {12*1024}", "s_add_u32 s33, s33, s34", f"s_add_u32 s{S_HO}, s33, {H}")

def p5_gen_consts(k, LC, T):
    k(f"v_and_b32 v{T}, 15, v1", f"s_lshl_b32 s33, s{S_BETA}, 4", f"v_add_u32 v{T}, s33, v{T}", f"v_cvt_f32_u32 v{T}, v{T}")
    k(f"v_lshrrev_b32 v{T+1}, 4, v1", f"v_lshl_add_u32 v{T+1}, v{T+1}, 2, s{S_W}", f"v_cvt_f32_u32 v{T+1}, v{T+1}")
    k(f"v_mul_f32 v{T+1}, v{T+1}, v{T}", f"v_mul_f32 v{T+1}, {fbits(1/16)}, v{T+1}", f"v_fract_f32 v{T+1}, v{T+1}", f"v_mul_f32 v{T}, {fbits(1/640)}, v{T}")
    k(f"s_lshl_b32 s33, s{S_W}, 2", f"s_add_u32 s33, s33, {LC}", f"v_lshl_add_u32 v{T+2}, v1, 4, s33")
    for k0 in range(0, 21, 3):
        for i in range(3): k(f"v_fmamk_f32 v{T+4+i}, v{T}, {fbits(k0+i)}, v{T+1}")
        for i in range(3): k(f"v_cos_f32 v{T+8+i}, v{T+4+i}", f"v_sin_f32 v{T+4+i}, v{T+4+i}")
        for i in range(3):
            k1 = k0+i; c, s_ = T+8+i, T+4+i; o = T+12+2*i
            if k1 in (0, 20): k(f"v_mul_f32 v{c}, 0.5, v{c}", f"v_mul_f32 v{s_}, 0.5, v{s_}")
            k(f"v_cvt_pk_bf16_f32 v{o}, v{c}, -v{s_}")
            if cls(k1)[1] is None:
                k(f"ds_write_b32 v{T+2}, v{o} offset:{1024*FRAG[k1]}")
            else:
                sg = "-" if cls(k1)[2] < 0 else ""
                k(f"v_cvt_pk_bf16_f32 v{o+1}, {sg}v{s_}, {sg}v{c}")
                k(f"ds_write2st64_b32 v{T+2}, v{o}, v{o+1} offset0:{4*FRAG[k1]} offset1:{4*FRAG[k1]+4}")

ACC = 4
HB = 84
DEPTH = 6
AD = 180
TA = 188
CF = 208
T4 = 224
def p4_addr(k):
    k(f"v_lshlrev_b32 v{AD}, 4, v1", f"v_add_u32 v{AD+1}, 4096, v{AD}")
    for u in range(4):
        k(f"s_xor_b32 s33, s{S_W}, {u}", "s_and_b32 s34, s33, 1", "s_lshr_b32 s33, s33, 1", "s_lshl_b32 s33, s33, 6", "s_add_u32 s33, s33, s34", "s_mul_i32 s33, s33, 49152")
        k(f"v_add_u32 v{AD+2+u}, s33, v{AD}")
def step_next(sreg):
    return [f"s_add_u32 s{sreg}, s{sreg}, 1", f"s_cmp_eq_u32 s{sreg}, 12", f"s_cselect_b32 s{sreg}, 0, s{sreg}"]
def w_loads(s_, sreg, ld=""):
    out = [f"s_mul_i32 s33, s{sreg}, 5120", f"s_add_u32 s33, s33, s{S_WO}"]
    out += [f"buffer_load_dwordx4 {a_(20*s_+4*a,4)}, v{AD+(a>>2)}, s[{SRD_WS}:{SRD_WS+3}], s33 offen offset:{1024*(a&3)}{ld}" for a in range(5)]
    return out
def h_loads(s_, sreg, ld=""):
    out = [f"s_lshl_b32 s34, s{sreg}, 10", f"s_add_u32 s34, s34, s{S_HO}"]
    out += [f"buffer_load_dwordx4 {v(HB+16*(s_%DEPTH)+4*u,4)}, v{AD+2+u}, s[{SRD_WS}:{SRD_WS+3}], s34 offen{ld}" for u in range(4)]
    return out
def mf4(s_):
    return [f"v_mfma_f32_16x16x32_bf16 {v(ACC+20*u+4*a,4)}, {a_(20*s_+4*a,4)}, {v(HB+16*(s_%DEPTH)+4*u,4)}, {v(ACC+20*u+4*a,4) if s_ else 0}" for u in range(4) for a in range(5)]
def y_loads(ld="", yreg=lambda k1: a_(4*k1,4)):
    out = [f"s_lshr_b32 s33, s{S_W}, 1", "s_lshl_b32 s33, s33, 5", f"s_add_u32 s33, s33, s{S_B32}", "s_lshl_b32 s33, s33, 1", f"s_and_b32 s34, s{S_W}, 1", "s_add_u32 s33, s33, s34",
           "s_mul_i32 s33, s33, 21504", f"s_add_u32 s33, s33, {Y}"]
    for k1 in range(21):
        if k1 and k1 % 8 == 0: out.append("s_add_u32 s33, s33, 8192")
        out.append(f"buffer_load_dwordx4 {yreg(k1)}, v{AD+((k1>>2)&1)}, s[{SRD_WS}:{SRD_WS+3}], s33 offen offset:{1024*(k1&3)}{ld}")
    return out
XR = 232
XA = 242
def x_loads():
    out = [f"v_lshrrev_b32 v{XA}, 2, v1", f"v_mul_u32_u24 v{XA}, 1280, v{XA}", f"v_and_b32 v{XA+1}, 3, v1", f"v_lshl_add_u32 v{XA}, v{XA+1}, 3, v{XA}",
           f"s_lshr_b32 s33, s{S_W}, 1", "s_lshl_b32 s33, s33, 5", f"s_add_u32 s33, s33, s{S_B32}", "s_lshl_b32 s33, s33, 1", f"s_and_b32 s34, s{S_W}, 1", "s_add_u32 s33, s33, s34",
           f"s_mul_i32 s33, s33, {16*1280}", f"s_lshl_b32 s34, s{S_BETA}, 5", "s_add_u32 s85, s33, s34"]
    out += [f"buffer_load_dwordx2 {v(XR+2*a,2)}, v{XA}, s[{SRD_X}:{SRD_X+3}], s85 offen offset:{256*a}" for a in range(5)]
    return out

def weave(k, mf, fill):
    n = len(mf); m = len(fill); j = 0
    for i in range(n):
        k(mf[i])
        e = (m*(i+1) + n - 1)//n
        k(*fill[j:e]); j = max(j, e)

def p45_tail(k, LC, LR, nyounger, yreg=None):
    LE = LR + 61440
    fused = yreg is not None
    if not fused: yreg = lambda k1: a_(4*k1,4)
    t = T4
    red = []
    for u in range(1, 4):
        red += [f"s_xor_b32 s33, s{S_W}, {u}", "s_mul_i32 s33, s33, 15360", f"s_add_u32 s33, s33, {LR+5120*(u-1)}", f"v_add_u32 v{t+u}, s33, v{AD}"]
    k(*red)
    k(f"v_add_u32 v{t}, {LC}, v{AD}")
    seq = []
    for k1 in range(21):
        re, im, _ = cls(k1)
        seq.append((k1, re, FRAG[k1]))
        if im is not None: seq.append((k1, im, FRAG[k1]+1))
    wr = [f"ds_write_b128 v{t+u}, {v(ACC+20*u+4*a,4)} offset:{1024*a}" for u in range(1, 4) for a in range(5)]
    started = set()
    rd = lambda n: f"ds_read_b128 {v(CF+4*(n%4),4)}, v{t} offset:{1024*seq[n][2]}"
    for n in range(3): k(rd(n))
    ops = ['r0', 'r1', 'r2']
    lastk = -1
    for n, (k1, acc, fr) in enumerate(seq):
        pend = len(ops) - 1 - ops.index(f"r{n}")
        w = f"lgkmcnt({pend})"
        if k1 != lastk: w = f"vmcnt({20-k1+nyounger}) " + w; lastk = k1
        k("s_waitcnt " + w)
        k(f"v_mfma_f32_16x16x32_bf16 {v(TA+4*acc,4)}, {v(CF+4*(n%4),4)}, {yreg(k1)}, {v(TA+4*acc,4) if acc in started else 0}")
        started.add(acc)
        if n+3 < len(seq): k(rd(n+3)); ops.append(f"r{n+3}")
        if n % 2 == 0 and wr: k(wr.pop(0)); ops.append('w')
    assert not wr
    if not fused: stamp(k, 4)
    k(f"s_xor_b32 s33, s{S_W}, 2", "s_mul_i32 s33, s33, 5120", f"s_add_u32 s33, s33, {LE}", f"v_add_u32 v{t}, s33, v{AD}")
    k(f"s_mul_i32 s33, s{S_W}, 15360", f"s_add_u32 s33, s33, {LR}", f"v_add_u32 v{t+1}, s33, v{AD}")
    k(f"s_mul_i32 s33, s{S_W}, 5120", f"s_add_u32 s33, s33, {LE}", f"v_add_u32 v{t+2}, s33, v{AD}")
    for a in range(5): k(f"ds_write_b128 v{t}, {v(TA+4*a,4)} offset:{1024*a}")
    k("s_waitcnt lgkmcnt(0)", "s_barrier")
    if not fused: stamp(k, 5)
    PT = HB
    for a in range(5): k(f"ds_read_b128 {v(PT+4*a,4)}, v{t+2} offset:{1024*a}")
    for i in range(10): k(f"ds_read_b128 {v(ACC+20+4*i,4)}, v{t+1} offset:{1024*i}")
    c72, c144, s72, s144 = (math.cos(2*math.pi/5), math.cos(4*math.pi/5), math.sin(2*math.pi/5), math.sin(4*math.pi/5))
    k(f"s_cmp_ge_u32 s{S_W}, 2", "s_cselect_b32 s86, -1.0, 1.0")
    k(f"s_mov_b32 s88, {fbits(c72)}", f"s_mov_b32 s89, {fbits(c144)}", f"s_mov_b32 s90, {fbits(s72)}", f"s_mov_b32 s91, {fbits(s144)}")
    k(f"s_mov_b32 s92, {fbits(-math.log2(math.e))}", f"s_mov_b32 s93, {fbits(2048*640/2)}")
    lo3, hi3 = "op_sel_hi:[1,0,1]", "op_sel:[0,1,0] op_sel_hi:[1,1,1]"
    neg1 = "neg_lo:[0,1] neg_hi:[0,1]"
    k("s_waitcnt lgkmcnt(10)")
    for i in range(5): k(f"ds_read_b128 {v(ACC+60+4*i,4)}, v{t+1} offset:{1024*(10+i)}")
    for i in range(0, 20, 2): k(f"v_pk_fma_f32 {v(TA+i,2)}, {v(TA+i,2)}, s[86:87], {v(PT+i,2)} {lo3}")
    SV = HB
    U = HB + 20
    for i in (0, 2):
        T0, P1r, P1i, P2r, P2i = (v(TA+4*q+i, 2) for q in range(5))
        u1, w1, u2, w2 = (v(U+4*q+i, 2) for q in range(4))
        k(f"v_pk_fma_f32 {u1}, {P1r}, s[88:89], {T0} {lo3}", f"v_pk_fma_f32 {u2}, {P1r}, s[88:89], {T0} {hi3}")
        k(f"v_pk_mul_f32 {w1}, {P1i}, s[90:91] op_sel_hi:[1,0]", f"v_pk_mul_f32 {w2}, {P1i}, s[90:91] op_sel:[0,1] op_sel_hi:[1,1]")
        k(f"v_pk_add_f32 {v(SV+i,2)}, {T0}, {P1r}")
        k(f"v_pk_fma_f32 {u1}, {P2r}, s[88:89], {u1} {hi3}", f"v_pk_fma_f32 {u2}, {P2r}, s[88:89], {u2} {lo3}")
        k(f"v_pk_fma_f32 {w1}, {P2i}, s[90:91], {w1} {hi3}", f"v_pk_fma_f32 {w2}, {P2i}, s[90:91], {w2} {lo3} neg_lo:[1,0,0] neg_hi:[1,0,0]")
        k(f"v_pk_add_f32 {v(SV+i,2)}, {v(SV+i,2)}, {P2r}")
        k(f"v_pk_add_f32 {v(SV+4+i,2)}, {u1}, {w1} {neg1}", f"v_pk_add_f32 {v(SV+16+i,2)}, {u1}, {w1}")
        k(f"v_pk_add_f32 {v(SV+8+i,2)}, {u2}, {w2} {neg1}", f"v_pk_add_f32 {v(SV+12+i,2)}, {u2}, {w2}")
    k("s_waitcnt lgkmcnt(5)")
    for i in range(0, 20, 2):
        k(f"v_pk_add_f32 {v(ACC+i,2)}, {v(ACC+i,2)}, {v(ACC+20+i,2)}")
    for i in range(0, 20, 2):
        k(f"v_pk_add_f32 {v(ACC+i,2)}, {v(ACC+i,2)}, {v(ACC+40+i,2)}")
    k("s_waitcnt lgkmcnt(0)")
    E = ACC + 20
    k(f"v_and_b32 v{t}, 15, v1", f"v_lshrrev_b32 v{t+1}, 4, v1", f"v_lshl_add_u32 v{t}, v{t}, 2, v{t+1}", f"v_lshl_add_u32 v{t}, v{t}, 3, s33", f"v_lshl_add_u32 v{t+1}, v1, 3, s33")
    for a in range(5):
        o = ACC+4*a; e = E+4*a; sv = SV+4*a
        for i in (0, 2): k(f"v_pk_add_f32 {v(o+i,2)}, {v(o+i,2)}, {v(ACC+60+4*a+i,2)}")
        for i in (0, 2): k(f"v_pk_mul_f32 {v(e+i,2)}, {v(o+i,2)}, s[92:93] op_sel_hi:[1,0]")
        for i in range(4): k(f"v_exp_f32 v{e+i}, v{e+i}")
        for i in (0, 2): k(f"v_pk_mul_f32 {v(o+i,2)}, {v(o+i,2)}, {v(sv+i,2)}")
        for i in (0, 2): k(f"v_pk_fma_f32 {v(e+i,2)}, {v(e+i,2)}, s[92:93], s[92:93] op_sel:[0,1,1] op_sel_hi:[1,1,1]")
        for i in range(4): k(f"v_rcp_f32 v{e+i}, v{e+i}")
        for i in (0, 2): k(f"v_pk_mul_f32 {v(o+i,2)}, {v(o+i,2)}, {v(e+i,2)}")
        k(f"v_cvt_pk_bf16_f32 v{e}, v{o}, v{o+1}", f"v_cvt_pk_bf16_f32 v{e+1}, v{o+2}, v{o+3}")
        k(f"ds_write_b64 v{t}, {v(e,2)} offset:{512*a}")
        k(f"ds_read_b64 {v(U+2*a,2)}, v{t+1} offset:{512*a}")
    k("s_waitcnt vmcnt(0)")
    for a in range(5):
        o = ACC+8*a
        for q in range(2): k(f"v_lshlrev_b32 v{o+2*q}, 16, v{XR+2*a+q}", f"v_and_b32 v{o+2*q+1}, 0xffff0000, v{XR+2*a+q}")
        k(f"s_waitcnt lgkmcnt({2*(4-a)})")
        for q in range(2): k(f"v_lshlrev_b32 v{o+4+2*q}, 16, v{U+2*a+q}", f"v_and_b32 v{o+4+2*q+1}, 0xffff0000, v{U+2*a+q}")
        for q in range(2): k(f"v_pk_add_f32 {v(o+2*q,2)}, {v(o+2*q,2)}, {v(o+4+2*q,2)}")
        k(f"v_cvt_pk_bf16_f32 v{o+4}, v{o}, v{o+1}", f"v_cvt_pk_bf16_f32 v{o+5}, v{o+2}, v{o+3}")
        k(f"buffer_store_dwordx2 {v(o+4,2)}, v{XA}, s[{SRD_O}:{SRD_O+3}], s85 offen offset:{256*a}")

def k4_kernel():
    k = Asm()
    prologue(k, 256, "L_k4_end")
    p4_ids(k)
    p4_addr(k)
    build_srds(k)
    LC, LR = 0, P5C_BYTES
    stamp(k, 0)
    for s_ in range(DEPTH): k(*w_loads(s_, S_ST), *h_loads(s_, S_ST), *step_next(S_ST))
    stamp(k, 1)
    p5_gen_consts(k, LC, T4)
    k("s_waitcnt lgkmcnt(0)", "s_barrier")
    stamp(k, 2)
    yl = y_loads(); xl = x_loads()
    out = 9*DEPTH
    extra = {7: yl[:15], 8: yl[15:23], 9: yl[23:], 10: xl}
    done = 0; issued = 9*DEPTH
    for s_ in range(12):
        k(f"s_waitcnt vmcnt({issued - 9*(s_+1)})")
        mf = mf4(s_)
        fill = []
        prev = s_ - 1 + DEPTH
        if s_ >= 1 and prev < 12: fill = w_loads(prev, S_ST) + h_loads(prev, S_ST) + step_next(S_ST)
        fill = fill + extra.get(s_, [])
        issued += sum(1 for x in fill if x.startswith('buffer_load'))
        weave(k, mf, fill)
    stamp(k, 3)
    p45_tail(k, LC, LR, 5)
    stamp(k, 6)
    stamp_end(k, 3, 7)
    k("L_k4_end:", "s_endpgm")
    return kernel("k4_kernel", k.text(), vgpr=512, accum=256), f"; @launch kernel=k4_kernel grid=(256,1,1) block=(256,1,1) lds={LR+61440+20480}\n"
if __name__ == "__main__":
    from p1 import k1_kernel
    from p2 import k2_kernel
    from p3 import k3_kernel
    ks = [k1_kernel(), k2_kernel(), k3_kernel(), k4_kernel()]
    open("v1.s", "w").write("".join(h for b, h in ks) + TARGET + "".join(b for b, h in ks))
    import common
    common.STAMPS = True
    ks = [k1_kernel(), k2_kernel(), k3_kernel(), k4_kernel()]
    open("v1_st.s", "w").write("".join(h for b, h in ks) + TARGET + "".join(b for b, h in ks))
```

```python
import sys, math
import common
from common import *
import p1 as P1, p3 as P3, p4 as P4
from p1 import cmul_pk, wave_sum

KN = "recurrent_scan__spectral_gfnet__swiglu_ffn__prompt_kernel"
SC = " sc1"
CSP = 0x550000
NONCE, F1, F2, F3 = FLG, FLG + 0x1000, FLG + 0x2000, FLG + 0xA000
WSR = f"s[{SRD_WS}:{SRD_WS+3}]"
S_N = 87
SLOT = 40992
GO, UO = 16384, 16384 + 12288 + 32
LC5 = 3*SLOT
LDS_BYTES = LC5 + P4.P5C_BYTES
L_P1 = 2*SLOT; L_G = SLOT; L_O = 2*SLOT; L_R = 0

class K(Asm):
    def __init__(self): super().__init__(); self.n = 0; self.tags = {}; self.cond = False
    def __call__(self, *lines):
        for s_ in "\n".join(lines).split("\n"):
            if s_.startswith('@'):
                self.tags[s_[1:]] = self.n; continue
            if s_.startswith('?'):
                t = s_[1:].split(',')
                w = f"s_waitcnt vmcnt({min(63, self.n - self.tags[t[0]])})"
                if len(t) > 1: w += f" lgkmcnt({t[1]})"
                super().__call__(w); continue
            if s_.startswith(('buffer_', 'global_')) and not self.cond: self.n += 1
            super().__call__(s_)

def weave(k, mf, fill, first=()):
    n = len(mf); m = len(fill); j = 0
    for i in range(n):
        k(mf[i])
        if i == 0 and first: k(*first); continue
        lo = 1 if first else 0
        e = (m*(i+1-lo) + (n-lo) - 1)//(n-lo)
        k(*fill[j:e]); j = max(j, e)

def merge(a, b):
    out = []; j = 0
    for i, x in enumerate(a):
        out.append(x)
        e = (len(b)*(i+1))//len(a)
        for g in b[j:e]: out += g
        j = max(j, e)
    return out

def publish(k, saddr_lines, tag):
    k(f"s_cmp_lg_u32 s{S_W}, 0", f"s_cbranch_scc1 L_pub_{tag}")
    k.cond = True
    k(*saddr_lines, f"v_mov_b32 v254, s{S_N}", "v_mov_b32 v255, 0", "s_mov_b64 exec, 1")
    k(f"buffer_store_dword v254, v255, {WSR}, s33 offen{SC}", "s_mov_b64 exec, -1")
    k.cond = False
    k(f"L_pub_{tag}:")

def check(k, tag, regs, reload):
    def cmp():
        k(f"v_cmp_ne_u32 vcc, s{S_N}, v{regs[0]}")
        for r in regs[1:]:
            k(f"v_cmp_ne_u32 s[100:101], s{S_N}, v{r}", "s_or_b64 vcc, vcc, s[100:101]")
    cmp()
    k(f"s_cbranch_vccz L_ok_{tag}")
    k.cond = True
    k("s_mov_b32 s32, 0", f"L_spin_{tag}:", "s_sleep 4", *reload, "s_waitcnt vmcnt(0)")
    cmp()
    k(f"s_cbranch_vccz L_ok_{tag}", "s_add_u32 s32, s32, 1", "s_cmp_lt_u32 s32, 0x8000", f"s_cbranch_scc1 L_spin_{tag}")
    k.cond = False
    k(f"L_ok_{tag}:")

ACC, FB = 4, 100
TW = 160
DX, DW, AX, AW = 192, 196, 200, 208
STT, CSL, SEL, CSD, PL, T2 = 212, 216, 140, 152, 236, 240
S_RB, S_CB, S_CI, S_XB, S_WB, S_MX, S_MW, S_C0 = 68, 69, 70, 71, 72, 77, 78, 79
AM = 184

def g1_setup(k):
    k("s_and_b32 s33, s2, 7", "s_lshr_b32 s34, s2, 3")
    k(f"s_and_b32 s{S_RB}, s33, 1", f"s_lshl_b32 s{S_RB}, s{S_RB}, 3", "s_lshr_b32 s32, s34, 2", f"s_add_u32 s{S_RB}, s{S_RB}, s32")
    k(f"s_lshr_b32 s{S_CB}, s33, 1", f"s_lshl_b32 s{S_CB}, s{S_CB}, 2", "s_and_b32 s34, s34, 3", f"s_add_u32 s{S_CB}, s{S_CB}, s34")
    k(f"s_mul_i32 s34, s34, {ROTC}", "s_lshr_b32 s34, s34, 1", f"s_add_u32 s34, s34, s{S_RB}")
    for _ in range(2): k("s_sub_u32 s33, s34, 10", "s_cmp_ge_u32 s34, 10", "s_cselect_b32 s34, s33, s34")
    k(f"s_mov_b32 s{S_CI}, s34", f"s_mov_b32 s{S_C0}, s34")
    k(f"s_lshl_b32 s33, s{S_RB}, 1", f"s_and_b32 s34, s{S_W}, 1", "s_add_u32 s33, s33, s34", f"s_lshr_b32 s32, s{S_W}, 1", "s_lshl_b32 s32, s32, 5", "s_add_u32 s33, s33, s32")
    k(f"s_mul_i32 s{S_XB}, s33, {32*1280}")
    k(f"s_mul_i32 s{S_WB}, s{S_CB}, 192", f"s_mul_i32 s34, s34, {32*3072}", f"s_add_u32 s{S_WB}, s{S_WB}, s34")
    k(f"s_lshl_b32 s{S_MX}, s{S_W}, 12")
    k(f"s_and_b32 s34, s{S_W}, 1", "s_mul_i32 s34, s34, 6144", f"s_lshr_b32 s33, s{S_W}, 1", f"s_mul_i32 s33, s33, {UO-GO}", "s_add_u32 s33, s33, s34", f"s_add_u32 s{S_MW}, s33, {GO}")
    t = T2
    k(f"v_lshrrev_b32 v{t}, 3, v1", f"v_mul_u32_u24 v{t}, 1280, v{t}", f"v_lshrrev_b32 v{t+1}, 4, v1", f"v_xor_b32 v{t+1}, v{t+1}, v1", f"v_and_b32 v{t+1}, 7, v{t+1}")
    k(f"v_lshl_add_u32 v{DX}, v{t+1}, 4, v{t}", f"v_xor_b32 v{t}, 64, v{DX}")
    k(f"v_add_u32 v{DX+1}, {10240-1024}, v{t}", f"v_add_u32 v{DX+2}, {2*(10240-1024)}, v{DX}", f"v_add_u32 v{DX+3}, {3*(10240-1024)}, v{t}")
    for q in range(3):
        k(f"v_add_u32 v{t}, {64*q}, v1", f"v_mul_u32_u24 v{t+1}, 0x5556, v{t}", f"v_lshrrev_b32 v{t+1}, 18, v{t+1}")
        k(f"v_mul_u32_u24 v{t+1}, {3072-192}, v{t+1}", f"v_lshl_add_u32 v{DW+q}, v1, 4, v{t+1}")

def g1_dma(c):
    sl = (c % 3)*SLOT
    X = lambda q: f"buffer_load_dwordx4 v{DX+q}, s[{SRD_X}:{SRD_X+3}], s73 offen offset:{1024*q} lds"
    W = lambda q: f"buffer_load_dwordx4 v{DW+q}, s[{SRD_W}:{SRD_W+3}], s74 offen offset:{1024*q} lds"
    return [[f"s_add_u32 m0, s{S_MX}, {sl}", f"s_lshl_b32 s73, s{S_CI}, 7", f"s_add_u32 s73, s73, s{S_XB}", X(0)], [X(1)],
            [f"s_mul_i32 s74, s{S_CI}, {64*3072}", X(2)], [f"s_add_u32 s74, s74, s{S_WB}", X(3)],
            [f"s_add_u32 m0, s{S_MW}, {sl}", f"s_add_u32 s{S_CI}, s{S_CI}, 1", W(0)], [f"s_cmp_eq_u32 s{S_CI}, 10", f"s_cselect_b32 s{S_CI}, 0, s{S_CI}", W(1)], [W(2)],
            [f"s_add_u32 m0, s{S_MW}, {sl+3072}", f"s_add_u32 s74, s74, {16*3072}", W(0)], [W(1)], [W(2), f"@c{c}"]]

def g1_addr(k):
    t = T2
    k(f"s_lshr_b32 s33, s{S_W}, 1", f"s_and_b32 s34, s{S_W}, 1")
    k(f"v_and_b32 v{t}, 31, v1", f"v_lshlrev_b32 v{t}, 7, v{t}", "s_lshl_b32 s32, s33, 13", f"v_add_u32 v{t}, s32, v{t}")
    k(f"v_bfe_u32 v{t+1}, v1, 1, 3", f"v_lshrrev_b32 v{t+2}, 5, v1", f"v_xor_b32 v{t+1}, v{t+1}, v{t+2}")
    k(f"v_lshl_add_u32 v{AX}, v{t+1}, 4, v{t}")
    for s_ in range(1, 4): k(f"v_xor_b32 v{AX+s_}, {32*s_}, v{AX}")
    for s_ in range(4): k(f"v_add_u32 v{AX+4+s_}, {2*SLOT}, v{AX+s_}")
    k(f"v_bfe_u32 v{t}, v1, 4, 1", f"v_mul_u32_u24 v{t}, {UO-GO}, v{t}")
    k(f"v_bfe_u32 v{t+1}, v1, 2, 2", f"v_lshl_add_u32 v{t+1}, v{t+2}, 3, v{t+1}", f"v_mul_u32_u24 v{t+1}, 192, v{t+1}")
    k(f"v_and_b32 v{t+2}, 3, v1", f"v_lshlrev_b32 v{t+2}, 3, v{t+2}", f"v_add3_u32 v{t}, v{t}, v{t+1}, v{t+2}")
    k("s_mul_i32 s34, s34, 96", f"s_add_u32 s34, s34, {GO}", f"v_add_u32 v{AW}, s34, v{t}", f"v_add_u32 v{AW+1}, {2*SLOT}, v{AW}")
    k(f"v_add_u32 v252, 4096, v3")

def g1_sel(k):
    t = T2
    k(f"v_and_b32 v{t}, 15, v1", f"v_bfe_u32 v{t+1}, v1, 4, 1", f"v_lshlrev_b32 v{t+1}, 2, v{t+1}", f"v_sub_u32 v{t}, v{t}, v{t+1}", f"v_mov_b32 v{t+1}, 0x3f803f80")
    for ph in range(3):
        k(f"v_cmp_eq_u32 vcc, {ph}, v{t}")
        for j in range(4): k(f"v_cndmask_b32 v{SEL+4*ph+j}, 0, v{t+1}, vcc")

def g1_reads(n):
    c, s_ = n >> 2, n & 3
    hi = c % 3 == 2; so = 0 if hi else (c % 3)*SLOT
    b = FB + 20*(n & 1)
    x = lambda tt: f"ds_read_b128 {v(b+4*tt,4)}, v{AX+4*hi+s_} offset:{so+4096*tt}"
    w = lambda ph, m: f"ds_read_b64_tr_b16 {v(b+8+4*ph+2*m,2)}, v{AW+hi} offset:{so+(16*s_+4*m)*192+32*ph}"
    return [x(0), w(0, 0), w(0, 1), x(1), w(1, 0), w(1, 1), w(2, 0), w(2, 1)]
def g1_mf(n):
    b = FB + 20*(n & 1)
    out = []
    for ph in range(3):
        for tt in range(2):
            a = v(ACC+16*(2*ph+tt), 16)
            out.append(f"v_mfma_f32_32x32x16_bf16 {a}, {v(b+8+4*ph,4)}, {v(b+4*tt,4)}, {a if n else 0}")
    return out
def g1_cs(n):
    b = FB + 20*(n & 1)
    return [f"v_mfma_f32_16x16x32_bf16 {v(CSD,4)}, {v(SEL+4*ph,4)}, {v(b+8+4*ph,4)}, {v(CSD,4) if (n or ph) else 0}" for ph in range(3)]

WV = 192
def wreg(s_, a): return v(WV+20*s_+4*a, 4) if s_ < 3 else a_(20*(s_-3)+4*a, 4)
S_WS = 86
def wd_groups(order):
    out = []
    for s_ in order:
        for a in range(5):
            g = []
            if a == 0: g = [f"s_add_u32 s75, s{P4.S_ST}, {s_}", "s_sub_u32 s76, s75, 12", "s_cmp_ge_u32 s75, 12", "s_cselect_b32 s75, s76, s75", "s_mul_i32 s75, s75, 5120", f"s_add_u32 s75, s75, s{P4.S_WO}"]
            out.append(g + [f"buffer_load_dwordx4 {wreg(s_,a)}, v{252 if a == 4 else 3}, {WSR}, s75 offen offset:{1024*(a&3)}{SC}"])
    return out

def gather_groups():
    T = T2
    pre = [f"v_lshrrev_b32 v{T}, 3, v1", f"v_mul_u32_u24 v{T}, {XW_BLK}, v{T}", f"v_lshrrev_b32 v{T+1}, 4, v1", f"v_xor_b32 v{T+1}, v{T+1}, v1", f"v_and_b32 v{T+1}, 7, v{T+1}",
           f"v_lshl_add_u32 v{T}, v{T+1}, 4, v{T}", f"v_xor_b32 v{T+1}, 64, v{T}",
           f"s_mul_i32 s88, s{S_W}, {64*XW_BLK}", "s_lshl_b32 s89, s2, 7", "s_add_u32 s88, s88, s89", "s_cmp_lt_u32 s2, 168", f"s_cselect_b32 s88, s88, {WS_SIZE}", f"s_lshl_b32 s89, s{S_W}, 13"]
    out = []
    for q in range(8):
        g = [f"s_add_u32 m0, s89, {L_G+1024*q}"]
        g.append(f"s_add_u32 s88, s88, {8*XW_BLK}" if q else "s_nop 0")
        out.append(g + [f"buffer_load_dwordx4 v{T+(q&1)}, {WSR}, s88 offen{SC} lds"])
    out[-1].append("@gather")
    return pre, out

def stats_groups():
    t = T2+2
    g0 = [f"v_and_b32 v{t}, 31, v1", f"v_lshlrev_b32 v{t+1}, 4, v{t}", f"v_lshlrev_b32 v{t}, 6, v{t}",
          f"s_lshr_b32 s33, s{S_RB}, 1", "s_lshl_b32 s33, s33, 11", f"s_and_b32 s34, s{S_RB}, 1", "s_lshl_b32 s34, s34, 5", "s_add_u32 s33, s33, s34",
          f"s_lshr_b32 s34, s{S_W}, 1", "s_lshl_b32 s34, s34, 3", "s_add_u32 s33, s33, s34", f"s_add_u32 s33, s33, {ST}"]
    out = [g0 + [f"buffer_load_dwordx2 {v(STT,2)}, v{t}, {WSR}, s33 offen{SC}"], [f"buffer_load_dwordx2 {v(STT+2,2)}, v{t}, {WSR}, s33 offen offset:16{SC}"]]
    g1 = [f"v_lshrrev_b32 v{t}, 5, v1", f"v_mul_u32_u24 v{t}, 5120, v{t}", f"v_add_u32 v{t+1}, v{t}, v{t+1}",
          f"s_mul_i32 s33, s{S_CB}, 10240", f"s_and_b32 s34, s{S_W}, 1", "s_lshl_b32 s34, s34, 9", "s_add_u32 s33, s33, s34", f"s_add_u32 s33, s33, {CSP}", "s_add_u32 s34, s33, 4096"]
    for q in range(5):
        out.append((g1 if q == 0 else []) + [f"buffer_load_dwordx4 {v(CSL+4*q,4)}, v{t+1}, {WSR}, s{33 if q < 4 else 34} offen offset:{1024*(q&3)}{SC}"])
    out[-1].append("@stats")
    return out

def gemm1(k, wdq):
    f1load = [f"s_mov_b32 s33, {F1}", f"buffer_load_dwordx4 {v(PL,4)}, v3, {WSR}, s33 offen{SC}"]
    k("?c0,0", "s_barrier")
    stamp(k, 2)
    k(*g1_reads(0))
    gpre, ggrp = gather_groups()
    for n in range(40):
        c, s_ = n >> 2, n & 3
        per = (n + 1) >> 2
        if (n + 1) & 3 == 0 or n == 0:
            if per <= 7: pend = g1_dma(per + 2)
            elif per == 8: pend = stats_groups() + ggrp
            elif per == 9: pend = [wdq.pop(0) for _ in range(NWD9)]
            else: pend = []
            left = 3 if n == 0 else 4
        take = (len(pend) + left - 1)//left; grp = pend[:take]; pend = pend[take:]; left -= 1
        k("s_waitcnt lgkmcnt(0)")
        mf = g1_mf(n); first = ()
        if n < 4: mf = merge(mf, [[x] for x in g1_cs(n)])
        if s_ == 3 and c < 9: first = (f"?c{c+1}", "s_barrier")
        rd = g1_reads(n+1) if n < 39 else []
        fill = rd[:4] + merge(rd[4:], grp) if rd else sum(grp, [])
        if n == 5:
            fill += [f"s_mul_i32 s33, s{S_CB}, 10", f"s_add_u32 s33, s33, s{S_C0}", "s_lshl_b32 s33, s33, 1", f"s_add_u32 s33, s33, s{S_W}", "s_lshl_b32 s33, s33, 9", f"s_add_u32 s33, s33, {CSP}",
                     f"s_cmp_lt_u32 s{S_RB}, 10", f"s_cselect_b32 s33, s33, {WS_SIZE}", f"s_cmp_lt_u32 s{S_W}, 2", f"s_cselect_b32 s33, s33, {WS_SIZE}",
                     f"s_mov_b32 exec_hi, 0\nbuffer_store_dwordx4 {v(CSD,4)}, v3, {WSR}, s33 offen{SC}\ns_mov_b32 exec_hi, -1"]
        if n == 24: fill += f1load + ["@f1"]
        if n == 29: fill += gpre
        if n == 39: fill += epi_prep()
        weave(k, mf, fill, first)
        if n == 11: publish(k, ["s_lshl_b32 s33, s2, 2", f"s_add_u32 s33, s33, {F1}"], "f1")
        if n == 30:
            k("?f1")
            check(k, "f1", [PL, PL+1, PL+2, PL+3], f1load)

BM, AMC = T2, T2+4
def epi_prep():
    fill = ["?stats"]
    for tt in range(2):
        m = STT+2*tt
        fill += [f"v_cvt_pk_bf16_f32 v{BM+2*tt}, -v{m}, -v{m}", f"v_lshlrev_b32 v{BM+2*tt+1}, 16, v{BM+2*tt}",
                 f"v_add_f32 v{BM+2*tt+1}, v{m}, v{BM+2*tt+1}", f"v_cvt_pk_bf16_f32 v{BM+2*tt+1}, -v{BM+2*tt+1}, -v{BM+2*tt+1}",
                 f"v_rsq_f32 v{m}, v{m+1}"]
    for (a, b) in ((0, 4), (8, 12), (0, 16), (0, 8)):
        fill += [f"v_pk_add_f32 {v(CSL+a,2)}, {v(CSL+a,2)}, {v(CSL+b,2)}", f"v_add_f32 v{CSL+a+2}, v{CSL+a+2}, v{CSL+b+2}"]
    for ph in range(3):
        c = CSL+ph; A = AMC+2*ph
        fill += [f"v_cvt_pk_bf16_f32 v{A}, v{c}, v{c}", f"v_lshlrev_b32 v{A}, 16, v{A}",
                 f"v_sub_f32 v{A}, v{c}, v{A}", f"v_cvt_pk_bf16_f32 v{A}, v{c}, v{A}", f"v_mov_b32 v{A+1}, v{A}"]
    return fill

def g1_epilogue(k, wdq):
    t = PL
    mf = [f"v_mfma_f32_32x32x8_bf16 {v(ACC+16*(2*ph+tt),16)}, {v(AMC+2*ph,2)}, {v(BM+2*tt,2)}, {v(ACC+16*(2*ph+tt),16)}" for ph in range(3) for tt in range(2)]
    fill = [f"v_mul_f32 v{STT+2*tt}, {fbits(-math.log2(math.e))}, v{STT+2*tt}" for tt in range(2)]
    fill += [f"v_bfe_u32 v{t}, v1, 4, 1", f"v_mul_u32_u24 v{t}, 49152, v{t}", f"v_lshrrev_b32 v{t+1}, 5, v1", f"v_lshl_add_u32 v{t}, v{t+1}, 8, v{t}",
             f"v_and_b32 v{t+1}, 15, v1", f"v_lshl_add_u32 v{t}, v{t+1}, 4, v{t}"]
    fill += [f"s_lshr_b32 s33, s{S_W}, 1", "s_lshl_b32 s33, s33, 4", f"s_add_u32 s33, s33, s{S_RB}", f"s_mul_i32 s33, s33, {4*49152}",
             f"s_and_b32 s34, s{S_W}, 1", f"s_lshl_b32 s32, s{S_CB}, 1", "s_add_u32 s34, s34, s32", "s_mul_i32 s34, s34, 1536", "s_add_u32 s33, s33, s34",
             f"s_add_u32 s33, s33, {H}", f"s_add_u32 s34, s33, {2*49152}"]
    weave(k, mf, fill)
    E = FB
    for ph in range(3):
        for tt in range(2):
            a = ACC+16*(2*ph+tt); e = E + 8*((2*ph+tt) & 1); st_ = v(STT+2*tt, 2)
            L = []
            L += [f"v_pk_mul_f32 {v(e+i,2)}, {v(a+i,2)}, {st_} op_sel_hi:[1,0]" for i in range(0, 8, 2)]
            L += [f"v_exp_f32 v{e+i}, v{e+i}" for i in range(8)]
            L += [f"v_pk_mul_f32 {v(a+i,2)}, {v(a+i,2)}, {v(a+8+i,2)}" for i in range(0, 8, 2)]
            L += [f"v_pk_fma_f32 {v(e+i,2)}, {v(e+i,2)}, {st_}, {st_} op_sel:[0,1,1] op_sel_hi:[1,1,1]" for i in range(0, 8, 2)]
            L += [f"v_rcp_f32 v{e+i}, v{e+i}" for i in range(8)]
            L += [f"v_pk_mul_f32 {v(a+i,2)}, {v(a+i,2)}, {v(e+i,2)}" for i in range(0, 8, 2)]
            L += [f"v_cvt_pk_bf16_f32 v{a+8+i}, v{a+2*i}, v{a+2*i+1}" for i in range(4)]
            k(*merge(L, [wdq.pop(0) for _ in range(NWDE)]))
            k(f"buffer_store_dwordx4 {v(a+8,4)}, v{t}, {WSR}, s{33+tt} offen offset:{512*ph}{SC}", "@h")

HB, DEPTH, AD = 84, 6, 180
def yreg(k1): return a_(AM+4*k1, 4) if k1 < 18 else a_(4*(k1-18), 4)

def build(stamps=False):
    common.STAMPS = stamps
    k = K()
    prologue(k, 256, "L_end")
    g1_setup(k)
    P4.p4_ids(k)
    build_srds(k)
    k(f"s_add_u32 s32, s54, {NONCE}", "s_addc_u32 s33, s55, 0", f"s_load_dword s{S_N}, s[32:33], 0")
    stamp(k, 0)
    k.cond = False
    P1.p1_issue(k, L_P1, cond=k)
    k("@p1")
    d0, d1 = g1_dma(0), g1_dma(1)
    k(*sum(d0[:ND0], []))
    k("s_cmp_ge_u32 s2, 84", "s_cselect_b32 s95, 1, 0")
    P3.p3_gen_consts(k, LC5, 95, 92)
    k("s_waitcnt lgkmcnt(0)", "s_barrier")
    k(f"s_mul_i32 s{S_N}, s{S_N}, 0x9e3779b1", f"s_add_u32 s{S_N}, s{S_N}, 0x7f4a7c15")
    P3.p3_load_consts(k, LC5, AM, TW, T2)
    P1.p1_consts(k)
    g1_addr(k)
    k("s_waitcnt lgkmcnt(0)", "s_barrier")
    P4.p5_gen_consts(k, LC5, 92)
    P1.p1_body(k, L_P1, SC, hooks={'x': "?x", 'ln': sum(d0[ND0:], []), 'bar': "?p1,0", 'post': sum(d1, [])}, cond=k)
    g1_sel(k)
    stamp(k, 1)
    wdq = wd_groups(list(range(3, 12)) + [0, 1, 2])
    gemm1(k, wdq)
    stamp(k, 3)
    g1_epilogue(k, wdq)
    stamp(k, 4)
    pubh = [f"s_lshl_b32 s33, s{S_RB}, 4", f"s_add_u32 s33, s33, s{S_CB}", "s_lshl_b32 s33, s33, 7", f"s_add_u32 s33, s33, {F2}"]
    f2load = [f"s_lshr_b32 s33, s{P4.S_B32}, 1", "s_lshl_b32 s33, s33, 11", f"s_add_u32 s33, s33, {F2}", "v_and_b32 v253, 15, v1", "v_lshlrev_b32 v253, 7, v253",
              f"buffer_load_dword v253, v253, {WSR}, s33 offen{SC}"]
    k("s_cmp_ge_u32 s2, 168", "s_cbranch_scc1 L_nop3")
    n0, tags0 = k.n, dict(k.tags)
    wq = list(wdq)
    k("?gather", "s_barrier")
    P3.p3_body(k, L_G, L_O, 2, 95, AM, TW, 4, SC, wq=wq, mid=lambda: (k("?h", "s_barrier"), publish(k, pubh, "f2a")), late=lambda: k(*f2load, "@f2"))
    k("@y", "?f2")
    k("s_branch L_p4", "L_nop3:")
    n1 = k.n - k.tags['y']
    k.n, k.tags = n0, tags0
    k(*sum(wdq[:10], []))
    k("?h", "s_barrier")
    publish(k, pubh, "f2b")
    k(*sum(wdq[10:], []))
    k(*f2load, "s_waitcnt vmcnt(0)", "@y")
    k("L_p4:")
    stamp(k, 5)
    check(k, "f2", [253], f2load)
    stamp(k, 6)
    for u in range(4):
        k(f"s_xor_b32 s33, s{S_W}, {u}", "s_and_b32 s34, s33, 1", "s_lshr_b32 s33, s33, 1", "s_lshl_b32 s33, s33, 6", "s_add_u32 s33, s33, s34", "s_mul_i32 s33, s33, 49152")
        k(f"v_add_u32 v{AD+2+u}, s33, v3")
    k(f"v_mov_b32 v{AD}, v3", f"v_mov_b32 v{AD+1}, v252")
    hl = lambda s_: P4.h_loads(s_, P4.S_ST, SC) + [f"@h{s_}"] + P4.step_next(P4.S_ST)
    for s_ in range(HPRE): k(*hl(s_))
    f3load = [f"s_lshr_b32 s33, s{S_W}, 1", f"s_mul_i32 s33, s33, {84*32}", f"s_add_u32 s33, s33, {F3}", "v_lshlrev_b32 v186, 5, v1",
              f"buffer_load_dword v187, v186, {WSR}, s33 offen offset:640{SC}", f"buffer_load_dword v186, v186, {WSR}, s33 offen{SC}"]
    yl = P4.y_loads(SC, yreg); xl = P4.x_loads()
    extra = {F3P: f3load + ["@f3"], F3P+2: yl[:15], F3P+3: yl[15:23], F3P+4: yl[23:], F3P+5: xl}
    nxt = HPRE
    for s_ in range(12):
        k(f"?h{s_}")
        if s_ == 0:
            k("s_barrier", "s_cmp_ge_u32 s2, 168", "s_cbranch_scc1 L_nof3")
            publish(k, ["s_lshl_b32 s33, s2, 5", f"s_add_u32 s33, s33, {F3}"], "f3")
            k("L_nof3:")
            stamp(k, 7)
        mf = [f"v_mfma_f32_16x16x32_bf16 {v(ACC+20*u+4*a,4)}, {wreg(s_,a)}, {v(HB+16*(s_%DEPTH)+4*u,4)}, {v(ACC+20*u+4*a,4) if s_ else 0}" for u in range(4) for a in range(5)]
        fill = []
        cnt = 0
        while nxt < 12 and nxt < s_ + DEPTH and cnt < 2: fill += hl(nxt); nxt += 1; cnt += 1
        weave(k, mf, fill + extra.get(s_, []))
        if s_ == F3P+1:
            k("?f3")
            check(k, "f3", [186, 187], f3load)
    stamp(k, 8)
    P4.p45_tail(k, LC5, L_R, 5, yreg)
    k("s_cmp_lg_u32 s2, 0", "s_cbranch_scc1 L_fin")
    publish(k, [f"s_mov_b32 s33, {NONCE}"], "n")
    k("L_fin:")
    stamp_end(k, 0, 9)
    k("L_end:", "s_endpgm")
    hdr = f"; @launch grid=(256,1,1) block=(256,1,1) lds={LDS_BYTES}\n"
    return hdr + TARGET + kernel(KN, k.text(), vgpr=512, accum=256)

ROTC, ND0, NWD9, NWDE, HPRE, F3P = 5, 4, 10, 3, 3, 5
if __name__ == "__main__":
    open("v2.s", "w").write(build())
    open("v2_rt.s", "w").write(build('rt'))
    open("v2_cyc.s", "w").write(build('cyc'))
```

```python
from asmkit import *
import math
XW_BLK = 21504
XW, ST, WD, H, Y, FLG = 0, 0x540000, 0x600000, 0x800000, 0xE00000, 0x1100000
WS_SIZE = 0x1200000
SRD_X, SRD_WS, SRD_F, SRD_W, SRD_WD, SRD_O = 4, 8, 12, 16, 20, 24
S_W = 3

def srd(k, d, lo, nbytes):
    k(f"s_mov_b32 s{d}, s{lo}", f"s_mov_b32 s{d+1}, s{lo+1}", f"s_mov_b32 s{d+2}, {nbytes}", f"s_mov_b32 s{d+3}, 0x20000")

def prologue(k, nwg, end):
    k(f"s_cmp_ge_u32 s2, {nwg}", f"s_cbranch_scc1 {end}")
    stamp_begin(k)
    k("s_load_dwordx16 s[36:51], s[0:1], 0", "s_load_dwordx4 s[52:55], s[0:1], 64")
    k("v_lshrrev_b32 v2, 6, v0", "v_and_b32 v1, 63, v0", f"v_readfirstlane_b32 s{S_W}, v2")

def build_srds(k):
    k("s_waitcnt lgkmcnt(0)")
    srd(k, SRD_X, 36, 2048*640*2)
    srd(k, SRD_WS, 54, WS_SIZE)
    k(f"s_bitcmp1_b32 s{S_W}, 0")
    k(f"s_cselect_b32 s{SRD_F}, s40, s38", f"s_cselect_b32 s{SRD_F+1}, s41, s39", f"s_mov_b32 s{SRD_F+2}, {2048*321*2}", f"s_mov_b32 s{SRD_F+3}, 0x20000")
    k(f"s_bitcmp1_b32 s{S_W}, 1")
    k(f"s_cselect_b32 s{SRD_W}, s46, s44", f"s_cselect_b32 s{SRD_W+1}, s47, s45", f"s_mov_b32 s{SRD_W+2}, {640*1536*2}", f"s_mov_b32 s{SRD_W+3}, 0x20000")
    srd(k, SRD_WD, 48, 640*1536*2)
    srd(k, SRD_O, 50, 2048*640*2)

STAMPS = False
STAMP_OFF = 0x1180000
ACTIVE = None
SEEN = []
def stamp(k, i):
    if isinstance(i, str):
        if i not in SEEN: SEEN.append(i)
        if not ACTIVE or i not in ACTIVE: return
        i = ACTIVE.index(i)
    if STAMPS: k(f"{'s_memrealtime' if STAMPS == 'rt' else 's_memtime'} s[{36+2*i}:{37+2*i}]")
def stamp_begin(k):
    if STAMPS: k("s_memtime s[96:97]", "s_memrealtime s[98:99]")
def stamp_end(k, kid, n):
    if not STAMPS: return
    k("s_waitcnt vmcnt(0)", "s_memtime s[94:95]", "s_memrealtime s[100:101]", "s_waitcnt lgkmcnt(0)")
    k(f"s_lshl_b32 s33, s2, 2", f"s_add_u32 s33, s33, s{S_W}", "s_lshl_b32 s33, s33, 6", f"s_add_u32 s33, s33, {STAMP_OFF + kid*65536}")
    k("s_mov_b64 exec, 1", "v_mov_b32 v2, 0")
    vals = ["s98", "s100"] + [("s94", "s96")] + [(f"s{36+2*i}", "s98" if STAMPS == 'rt' else "s96") for i in range(n)]
    for j, x in enumerate(vals):
        if isinstance(x, tuple): k(f"s_sub_u32 s34, {x[0]}, {x[1]}", f"v_mov_b32 v{4+j}, s34")
        else: k(f"v_mov_b32 v{4+j}, {x}")
        k(f"buffer_store_dword v{4+j}, v2, s[{SRD_WS}:{SRD_WS+3}], s33 offen offset:{4*j}")
```

```python
import sys, importlib, common
G = importlib.import_module(sys.argv[1] if len(sys.argv) > 1 else 'gen3')
common.ACTIVE = None
txt = G.build()
launch, rest = txt.split("\n", 1)
ref = open('recurrent_scan__spectral_gfnet__swiglu_ffn__prompt.s.ref').read().split("\n")
head = [l for l in ref[:11]]
doc = """;
; out = x + irfft2(rfft2(LN(x)) * W) * silu((silu(LN(x) Wg) * (LN(x) Wu)) Wd)        S = 2048, D = 640, F = 1536
;
; One persistent launch, one workgroup (4 waves, 512 registers each) per CU; generated by my own script (straight-line code).
; All matrix work is bf16 MFMA with fp32 accumulation; every DFT / twiddle constant is built in the kernel with v_sin / v_cos.
;
;  all 256 workgroups   8 rows each: LayerNorm (two-pass statistics), radix-2 fold of rows n / n+1024, 640-point row transform
;                       as 40 x 16 (columns k = k1 + 40 k2, k1 = 0..20; k > 320 stands for its mirror image), and a 32 x 64
;                       piece of Wd re-laid as MFMA fragments.
;  workgroups 0..191    128 x 128 tile of h = silu(g) * u from raw x:  g = rstd * (x Wg - mean * colsum(Wg)), same for u
;                       (column sums come from a ones-MFMA, the mean term is one more MFMA with hi/lo split operands).
;  workgroups 192..255  re-lay the filter column-wise, then for 672 (column, parity) jobs: 1024-point FFT (32 x 32), times W,
;                       inverse FFT, all in registers.
;  all 256 workgroups   64 x 80 tile of h Wd (K split over the waves), inverse row transform of the same tile (dense over
;                       128 columns, then a radix-5 butterfly), unfold, gate, add x, store.
;
; Hand-offs go through d_ws with write-through (sc1) stores, a drained wait, then a flag word holding this launch's tag;
; readers poll the flags and load with sc1.  The tag is derived from one word found in d_ws on entry, only to tell this
; launch's flags from older ones; waits are bounded.  Workgroup ids are mapped for L2 locality only, never for correctness.
; The one-instruction stubs at the head of each 4 KB code page let a wave touch a page shortly before it is needed.
;""".split("\n")
out = "\n".join(head + doc + [launch]) + "\n" + rest
open('recurrent_scan__spectral_gfnet__swiglu_ffn__prompt.s', 'w').write(out)
print(len(out))
```
